```python
import torch

def _softmax(x, axis=-1):
    return torch.softmax(x, dim=axis)
def _gelu(x):
    return torch.nn.functional.gelu(x, approximate="tanh")
def _silu(x):
    return torch.nn.functional.silu(x)
def _sigmoid(x):
    return torch.sigmoid(x)
def _layernorm(x, axis=-1, eps=1e-5):
    m = x.mean(dim=axis, keepdim=True)
    v = x.var(dim=axis, keepdim=True, unbiased=False)
    return (x - m) / torch.sqrt(v + eps)
def _scatter_add(tgt, idx, src, axis=0):
    return tgt.clone().index_add_(axis, idx, src)
def _segment_sum(src, seg, n):
    out = torch.zeros((n,) + src.shape[1:], dtype=src.dtype)
    return out.index_add_(0, seg, src)
def _pad(x, pw):
    flat = tuple(v for pair in reversed(pw) for v in pair)
    return torch.nn.functional.pad(x, flat)

kernel_name = 'gated_mix__softmax_full_mha__mixer_s_mlp__prompt'

def setup_inputs():

    _w = (lambda a: (lambda t: t.to(torch.bfloat16) if t.is_floating_point() else t)(torch.as_tensor(a)))
    def _A_setup():
        B, S, D = 1, 2048, 512
        return {
            "x": _w((lambda *s: torch.randn(*s, dtype=torch.bfloat16) * 0.05)(B, S, D)),
            "wqkv": _w((lambda *s: torch.randn(*s, dtype=torch.bfloat16) * 1.6)(D, 3 * D)),
            "wo": _w((lambda *s: torch.randn(*s, dtype=torch.bfloat16) * 0.1)(D, D)),
        }
    _A_in = _A_setup()

    def _B_setup():
        B, S, D, F = 1, 2048, 512, 1376
        return {
            "x":  _w((lambda *s: torch.randn(*s, dtype=torch.bfloat16) * 0.05)(B, S, D)),
            "w1": _w((lambda *s: torch.randn(*s, dtype=torch.bfloat16) * 3.2)(D, D) * (D ** -0.5)),
            "w2": _w((lambda *s: torch.randn(*s, dtype=torch.bfloat16) * 3.2)(D, D) * (D ** -0.5)),
            "w3": _w((lambda *s: torch.randn(*s, dtype=torch.bfloat16) * 3.2)(D, F) * (D ** -0.5)),
            "w4": _w((lambda *s: torch.randn(*s, dtype=torch.bfloat16) * 1.6)(F, D) * (F ** -0.5)),
        }
    _B_in = _B_setup()

    return {
        "A_x": _A_in["x"],
        "A_wqkv": _A_in["wqkv"],
        "A_wo": _A_in["wo"],
        "B_x": _B_in["x"],
        "B_w1": _B_in["w1"],
        "B_w2": _B_in["w2"],
        "B_w3": _B_in["w3"],
        "B_w4": _B_in["w4"],
        "gate_w": _w((lambda *s: torch.randn(*s, dtype=torch.bfloat16) * 0.05)(512) * 16.0),
    }

def reference(A_x, A_wqkv, A_wo, B_x, B_w1, B_w2, B_w3, B_w4, gate_w):
    def _A_ref(x, wqkv, wo):
        B, S, D = x.shape
        H = 32; Dh = D // H
        qkv = (lambda x, *d: x.permute(*d))((x @ wqkv).reshape(B, S, 3, H, Dh), 2, 0, 3, 1, 4)
        q, k, v = qkv[0], qkv[1], qkv[2]
        scale = Dh ** -0.5
        scores = torch.einsum("bhqd,bhkd->bhqk", q, k) * scale
        p = _softmax(scores, axis=-1)
        o = torch.einsum("bhqk,bhkd->bhqd", p, v)
        return (lambda x, *d: x.permute(*d))(o, 0, 2, 1, 3).reshape(B, S, D) @ wo

    def _B_ref(x, w1, w2, w3, w4):
        B, S, D = x.shape
        h = _gelu(_layernorm(x, axis=-1) @ w1)
        c = D // 4
        g0 = _pad(h[:, :, 0*c:1*c], ((0, 0), (1, 0), (0, 0)))[:, :S, :]
        g1 = _pad(h[:, :, 1*c:2*c], ((0, 0), (0, 1), (0, 0)))[:, 1:, :]
        g2 = _pad(h[:, :, 2*c:3*c], ((0, 0), (2, 0), (0, 0)))[:, :S, :]
        g3 = _pad(h[:, :, 3*c:   ], ((0, 0), (0, 2), (0, 0)))[:, 2:, :]
        hs = torch.concatenate([g0, g1, g2, g3], axis=-1) @ w2
        x1 = x + hs
        h2 = _gelu(_layernorm(x1, axis=-1) @ w3) @ w4
        return x1 + h2

    x = A_x
    g = _sigmoid((x * gate_w).sum(-1, keepdims=True))
    a = _A_ref(x, A_wqkv, A_wo)
    b = _B_ref(x, B_w1, B_w2, B_w3, B_w4)
    return g * a + (1 - g) * b
```

```python
import re


def v(i, n=1):
    return f"v{i}" if n == 1 else f"v[{i}:{i + n - 1}]"


def a(i, n=1):
    return f"a{i}" if n == 1 else f"a[{i}:{i + n - 1}]"


def s(i, n=1):
    return f"s{i}" if n == 1 else f"s[{i}:{i + n - 1}]"


class Asm:
    _guid = 0

    def __init__(self):
        self.lines = []

    def I(self, text):
        for ln in text.split("\n"):
            ln = ln.strip()
            if ln:
                self.lines.append("    " + ln)

    def C(self, text):
        self.lines.append("    ; " + text)

    def L(self, name):
        self.lines.append(name + ":")

    def raw(self, text):
        self.lines.append(text)

    def uid(self, prefix="L"):
        Asm._guid += 1
        return f"{prefix}_{Asm._guid}"

    def nop(self, n):
        while n > 0:
            k = min(n, 16)
            self.I(f"s_nop {k - 1}")
            n -= k

    def text(self):
        return "\n".join(self.lines) + "\n"


REG_RE = re.compile(r"^(-|abs\()?([vsa])(\d+)\)?$")
RNG_RE = re.compile(r"^(-|abs\()?([vsa])\[(\d+):(\d+)\]\)?$")
TRANS = ("v_exp_f32", "v_log_f32", "v_rcp_f32", "v_rsq_f32", "v_sqrt_f32", "v_sin_f32", "v_cos_f32",
         "v_exp_f16", "v_rcp_f16", "v_rcp_iflag_f32")


def regs_of(op):
    op = op.strip()
    m = REG_RE.match(op)
    if m:
        return [(m.group(2), int(m.group(3)))]
    m = RNG_RE.match(op)
    if m:
        return [(m.group(2), i) for i in range(int(m.group(3)), int(m.group(4)) + 1)]
    if op == "vcc":
        return [("s", "vcc_lo"), ("s", "vcc_hi")]
    if op in ("vcc_lo", "vcc_hi"):
        return [("s", op)]
    if op == "exec":
        return [("s", "exec_lo"), ("s", "exec_hi")]
    if op in ("exec_lo", "exec_hi"):
        return [("s", op)]
    if op == "m0":
        return [("s", "m0")]
    return []


class Ins:
    __slots__ = ("text", "op", "ops", "mods", "defs", "uses", "cls", "idx", "passes", "srcc", "ab", "label",
                 "target", "nops", "lds", "sdata")

    def __repr__(self):
        return f"[{self.idx}] {self.text}"


def split_operands(rest):
    out, depth, cur = [], 0, ""
    for ch in rest:
        if ch in "[(":
            depth += 1
        if ch in "])":
            depth -= 1
        if ch == "," and depth == 0:
            out.append(cur.strip())
            cur = ""
        else:
            cur += ch
    if cur.strip():
        out.append(cur.strip())
    return out


def parse_line(line):
    t = line.split(";")[0].strip()
    if not t or t.startswith("."):
        return None
    ins = Ins()
    ins.text = t
    ins.label = None
    ins.target = None
    ins.nops = 1
    ins.passes = 0
    ins.srcc = []
    ins.ab = []
    ins.lds = False
    ins.sdata = []
    if t.endswith(":"):
        ins.op = "label"
        ins.cls = "label"
        ins.label = t[:-1]
        ins.defs, ins.uses, ins.ops, ins.mods = [], [], [], ""
        ins.nops = 0
        return ins
    parts = t.split(None, 1)
    op = parts[0]
    rest = parts[1] if len(parts) > 1 else ""
    for suf in ("_e32", "_e64", "_dpp", "_sdwa"):
        if op.endswith(suf):
            op = op[: -len(suf)]
    ins.op = op
    raw_ops = split_operands(rest)
    mods = ""
    if raw_ops:
        last = raw_ops[-1].split(None, 1)
        raw_ops[-1] = last[0]
        if len(last) > 1:
            mods = last[1]
    ins.ops = raw_ops
    ins.mods = mods
    R = [regs_of(o) for o in raw_ops]
    defs, uses = [], []
    cls = "other"
    EXEC = [("s", "exec_lo"), ("s", "exec_hi")]
    VCC = [("s", "vcc_lo"), ("s", "vcc_hi")]
    if op.startswith("v_mfma") or op.startswith("v_smfmac"):
        cls = "mfma"
        defs = R[0]
        uses = R[1] + R[2] + R[3]
        ins.ab = R[1] + R[2]
        ins.srcc = R[3]
        ins.passes = 8 if "32x32" in op else 4
    elif op.startswith("v_cmp"):
        cls = "valu"
        defs = R[0]
        uses = sum(R[1:], [])
    elif op in ("v_readfirstlane_b32", "v_readlane_b32"):
        cls = "readlane"
        defs = R[0]
        uses = sum(R[1:], [])
    elif op.startswith("v_permlane"):
        cls = "permlane"
        defs = R[0] + R[1]
        uses = R[0] + R[1]
    elif op.startswith("v_"):
        cls = "trans" if op in TRANS else "valu"
        if "row_" in mods or "quad_perm" in mods or "wave_" in mods or "dpp" in parts[0]:
            cls = "dpp"
        defs = list(R[0])
        uses = sum(R[1:], [])
        if op in ("v_add_co_u32", "v_sub_co_u32", "v_addc_co_u32", "v_subb_co_u32", "v_div_scale_f32", "v_mad_u64_u32"):
            defs += R[1]
            uses = sum(R[2:], [])
        if op in ("v_fmac_f32", "v_dot2c_f32_bf16", "v_pk_fmac_f16", "v_writelane_b32", "v_fmaak_f32x"):
            uses = uses + R[0]
        if op == "v_cndmask_b32" and len(raw_ops) == 3:
            uses = uses + VCC
        if cls == "dpp":
            uses = uses + R[0]
    elif op.startswith("ds_"):
        if op.startswith("ds_read") or op.startswith("ds_bpermute") or op.startswith("ds_swizzle") or op.startswith("ds_permute"):
            cls = "ds_read"
            defs = R[0]
            uses = sum(R[1:], [])
        elif "_rtn" in op:
            cls = "ds_read"
            defs = R[0]
            uses = sum(R[1:], [])
        else:
            cls = "ds_write"
            uses = sum(R, [])
            ins.sdata = sum(R[1:], [])
    elif op.startswith("buffer_") or op.startswith("global_"):
        allmods = (mods + " " + " ".join(raw_ops)).split()
        if op in ("buffer_inv", "buffer_wbl2"):
            cls = "vmem_other"
        elif "lds" in allmods or op.startswith("global_load_lds"):
            cls = "lds_dma"
            ins.lds = True
            uses = sum(R, []) + [("s", "m0")]
        elif "_load" in op:
            cls = "vmem_load"
            defs = R[0]
            uses = sum(R[1:], [])
        elif "_store" in op:
            cls = "vmem_store"
            uses = sum(R, [])
            ins.sdata = R[0] if op.startswith("buffer_") else R[1]
        elif "_atomic" in op:
            rtn = "sc0" in allmods
            cls = "vmem_load" if rtn else "vmem_store"
            if op.startswith("buffer_"):
                uses = sum(R, [])
                defs = R[0] if rtn else []
            else:
                if rtn:
                    defs = R[0]
                    uses = sum(R[1:], [])
                else:
                    uses = sum(R, [])
    elif op.startswith("s_load") or op.startswith("s_buffer_load") or op in ("s_memtime", "s_memrealtime"):
        cls = "smem"
        defs = R[0]
        uses = sum(R[1:], [])
    elif op == "s_waitcnt":
        cls = "waitcnt"
        ins.ops = rest.replace(",", " ").split()
    elif op == "s_nop":
        cls = "nop"
        ins.nops = int(raw_ops[0], 0) + 1
    elif op == "s_barrier":
        cls = "barrier"
    elif op.startswith("s_cbranch") or op == "s_branch":
        cls = "branch"
        ins.target = raw_ops[0]
        if "vcc" in op:
            uses = VCC
        if "exec" in op:
            uses = EXEC
    elif op == "s_endpgm":
        cls = "end"
    elif op.startswith("s_cmp") or op.startswith("s_bitcmp"):
        cls = "salu"
        uses = sum(R, [])
    elif op in ("s_setprio", "s_sleep", "s_setreg_b32", "s_setreg_imm32_b32"):
        cls = "salu"
        uses = sum(R, [])
    elif op.startswith("s_"):
        cls = "salu"
        defs = list(R[0]) if R else []
        uses = sum(R[1:], [])
        if "saveexec" in op:
            defs += EXEC
            uses += EXEC
        if op in ("s_addk_i32", "s_mulk_i32"):
            uses += R[0]
    ins.cls = cls
    ins.defs = defs
    ins.uses = uses
    return ins


def parse(text):
    out = []
    for ln in text.split("\n"):
        i = parse_line(ln)
        if i is not None:
            out.append(i)
    for k, i in enumerate(out):
        i.idx = k
    return out


VALU_CLS = ("valu", "trans", "dpp", "permlane", "readlane")


def make_trace(prog, start_label, take=None, loop_iters=2, maxlen=400000):
    take = take or {}
    labels = {i.label: i.idx for i in prog if i.cls == "label"}
    pc = labels[start_label]
    trace = []
    cnt = {}
    fcount = {}
    while len(trace) < maxlen:
        i = prog[pc]
        if i.cls != "label":
            trace.append(i)
        if i.cls == "end":
            break
        if i.cls == "branch":
            tgt = labels[i.target]
            if i.op == "s_branch":
                pc = tgt
                continue
            if tgt <= pc:
                c = cnt.get(pc, 0) + 1
                lim = take.get(("loop", i.target), loop_iters)
                if c < lim:
                    cnt[pc] = c
                    pc = tgt
                    continue
                cnt[pc] = 0
            else:
                t = take.get(i.target, False)
                if isinstance(t, (list, tuple)):
                    n = fcount.get(i.target, 0)
                    fcount[i.target] = n + 1
                    t = t[min(n, len(t) - 1)]
                if t:
                    pc = tgt
                    continue
        pc += 1
    return trace


def isv(r):
    return r[0] in ("v", "a")


def check_hazards(trace, name=""):
    errs = []
    n = len(trace)
    for p in range(n):
        P = trace[p]
        need_max = 0
        if P.cls in VALU_CLS:
            need_max = 5
        if P.cls == "mfma":
            need_max = 12
        if P.cls in ("vmem_store", "ds_write"):
            need_max = 2
        if P.cls == "salu":
            need_max = 1
        if need_max == 0:
            continue
        states = 0
        q = p + 1
        pdefs = set(P.defs)
        pv = {r for r in pdefs if isv(r)}
        ps = {r for r in pdefs if r[0] == "s"}
        while q < n and states < need_max:
            Q = trace[q]
            quse = set(Q.uses)
            qdef = set(Q.defs)

            def bad(req, why):
                if states < req:
                    errs.append(f"{name}: {why}: need {req} states, have {states}\n    P: {P.text}\n    Q: {Q.text}")

            if P.cls in VALU_CLS:
                if pv & quse:
                    if Q.cls == "mfma":
                        bad(2, "VALU->MFMA read")
                    if Q.cls == "dpp":
                        bad(2, "VALU->DPP read")
                    if Q.cls == "permlane":
                        bad(2, "VALU->permlane read")
                    if Q.cls == "readlane":
                        bad(1, "VALU->readlane")
                    if P.cls == "trans" and Q.cls != "trans":
                        bad(1, "trans->use")
                    if P.cls == "trans" and Q.cls == "trans":
                        bad(1, "trans->trans use (conservative)")
                if P.op.startswith("v_dot2") and (pv & (quse | qdef)):
                    if Q.op != P.op:
                        bad(3, "DLop->other op")
                    elif P.op == "v_dot2c_f32_bf16" and (pv & set(sum([regs_of(o) for o in Q.ops[1:]], []))):
                        bad(3, "DLop->same op A/B")
                if ps & quse:
                    if Q.cls in ("vmem_load", "vmem_store", "lds_dma"):
                        bad(5, "VALU SGPR write->VMEM")
                    if Q.cls in VALU_CLS:
                        bad(2, "VALU SGPR write->VALU read")
                    if Q.cls == "readlane" and Q.op == "v_readlane_b32":
                        bad(4, "VALU SGPR write->readlane select")
            if P.cls == "mfma":
                pa = P.passes
                d = pv
                if Q.cls == "mfma":
                    if set(Q.srcc) & d:
                        if set(Q.srcc) == d and Q.passes == pa:
                            pass
                        else:
                            bad(10 if pa == 8 else 6, "MFMA D->overlapping SrcC")
                    if set(Q.ab) & d:
                        bad(12 if pa == 8 else 8, "MFMA D->MFMA A/B")
                    if (qdef & d) and not (set(Q.srcc) == d):
                        bad(12 if pa == 8 else 8, "MFMA D->MFMA D WAW (conservative)")
                else:
                    if (quse | qdef) & d and Q.cls not in ("label",):
                        bad(12 if pa == 8 else 8, "MFMA D->VALU/VMEM/DS access")
                    if Q.cls in VALU_CLS and (qdef & set(P.srcc)):
                        bad(7 if pa == 8 else 3, "MFMA SrcC WAR")
            if P.cls == "vmem_store" and len(P.sdata) >= 3:
                if qdef & set(P.sdata):
                    bad(2 if Q.cls in VALU_CLS else 1, "wide store data WAR")
            if P.cls == "salu" and ("s", "m0") in pdefs and Q.cls == "lds_dma":
                bad(1, "M0 write->LDS DMA")
            states += Q.nops
            q += 1
    return errs


def check_waits(trace, name=""):
    errs = []
    vm = []
    lg = []
    smem_out = False
    for I in trace:
        acc = set(I.uses) | set(I.defs)
        if I.cls == "waitcnt":
            txt = " ".join(I.ops)
            m = re.search(r"vmcnt\((\d+)\)", txt)
            if m:
                k = int(m.group(1))
                if len(vm) > k:
                    vm = vm[len(vm) - k:] if k else []
            m = re.search(r"lgkmcnt\((\d+)\)", txt)
            if m:
                k = int(m.group(1))
                if any(e[0].cls == "smem" for e in lg) and k != 0:
                    errs.append(f"{name}: counted lgkmcnt with SMEM outstanding: {I.text}")
                if len(lg) > k:
                    lg = lg[len(lg) - k:] if k else []
            continue
        for lst, nm in ((vm, "vm"), (lg, "lgkm")):
            for (J, regs) in lst:
                hit = acc & regs
                if hit:
                    errs.append(f"{name}: {nm} outstanding {sorted(hit)[:3]}\n    load: {J.text}\n    user: {I.text}")
        if I.cls in ("vmem_load", "vmem_store", "lds_dma", "vmem_other"):
            vm.append((I, set(I.defs)))
            if len(vm) > 63:
                errs.append(f"{name}: vmcnt overflow (>63 outstanding) at {I.text}")
        if I.cls in ("ds_read", "ds_write", "smem"):
            lg.append((I, set(I.defs)))
    return errs


def check_kernel(text, start_label, takes=({},), loop_iters=3):
    prog = parse(text)
    allerrs = []
    for k, t in enumerate(takes):
        tr = make_trace(prog, start_label, t, loop_iters)
        allerrs += check_hazards(tr, f"{start_label}#{k}")
        allerrs += check_waits(tr, f"{start_label}#{k}")
    seen = set()
    out = []
    for e in allerrs:
        key = e.split(":", 1)[1]
        if key not in seen:
            seen.add(key)
            out.append(e)
    return out
```

```python
from common import *
import common

TILEB = 2304
SLOTB = 8 * TILEB
NSLOT = 3
L_FLAG = NSLOT * SLOTB
LDS_BYTES = L_FLAG + 64

S_KV, S_Q, S_O = 8, 12, 16
S_WS = 20
S_WAVE, S_HEAD, S_JB = 22, 23, 24
S_NXT, S_DMA = 26, 27
S_GO = 28
S_CNT, S_PASS, S_T0, S_T1 = 29, 30, 31, 32
S_LW = 33
S_GO0 = 36
S_EX = 38

V_L16 = 1
V_A0, V_A1 = 2, 3
V_VA = 2
V_AK = 4
V_Q = 10
V_K = 18
V_V = 26
V_P = 42
V_S = 50
V_O = 82
V_CN = 114
V_T = 146
VGPRS = 168

EXP = set()


def dma_chunk(k):
    k.I(f"""
    s_add_u32 m0, {s(S_DMA)}, {s(S_LW)}
    s_add_u32 {s(S_T0)}, {s(S_GO)}, 8192
    buffer_load_dwordx4 {v(V_L16)}, {s(S_KV, 4)}, {s(S_GO)} offen lds
    buffer_load_dwordx4 {v(V_L16)}, {s(S_KV, 4)}, {s(S_GO)} offen offset:1024 lds
    s_add_u32 m0, m0, {4 * TILEB}
    s_add_u32 {s(S_GO)}, {s(S_GO)}, 16384
    buffer_load_dwordx4 {v(V_L16)}, {s(S_KV, 4)}, {s(S_T0)} offen lds
    buffer_load_dwordx4 {v(V_L16)}, {s(S_KV, 4)}, {s(S_T0)} offen offset:1024 lds
    """)


def load_q(k):
    k.I(f"""
    s_lshl_b32 {s(S_T0)}, {s(S_HEAD)}, 6
    s_lshl_b32 {s(S_T1)}, {s(S_JB)}, 3
    s_add_u32 {s(S_T0)}, {s(S_T0)}, {s(S_T1)}
    s_lshl_b32 {s(S_T1)}, {s(S_WAVE)}, 1
    s_add_u32 {s(S_T0)}, {s(S_T0)}, {s(S_T1)}
    s_lshl_b32 {s(S_T0)}, {s(S_T0)}, 10
    buffer_load_dwordx4 {v(V_Q, 4)}, {v(V_L16)}, {s(S_Q, 4)}, {s(S_T0)} offen
    buffer_load_dwordx4 {v(V_Q + 4, 4)}, {v(V_L16)}, {s(S_Q, 4)}, {s(S_T0)} offen offset:1024
    """)


def next_slot(k, r):
    k.I(f"""
    s_add_u32 {s(r)}, {s(r)}, {SLOTB}
    s_cmp_eq_u32 {s(r)}, {NSLOT * SLOTB}
    s_cselect_b32 {s(r)}, 0, {s(r)}
    """)


def mfma(k, d, a_, b_, c):
    if "nopv" in EXP and V_O <= d < V_O + 32:
        return
    if "noqk" in EXP and d < V_O:
        return
    k.I(f"v_mfma_f32_32x32x16_bf16 {v(d, 16)}, {v(a_, 4)}, {v(b_, 4)}, {c}")


def dma_one(k, c, i):
    lds = (c % NSLOT) * SLOTB + (i >> 1) * 4 * TILEB
    go = c * 16384 + (i >> 1) * 8192
    k.I(f"""
    s_add_u32 m0, {s(S_LW)}, {lds}
    s_add_u32 {s(S_T0)}, {s(S_GO0)}, {go}
    buffer_load_dwordx4 {v(V_L16)}, {s(S_KV, 4)}, {s(S_T0)} offen offset:{(i & 1) * 1024} lds
    """)


def subtile(k, t, z):
    S = V_S + 16 * z
    Sn = V_S + 16 * (1 - z)
    b, nb = t & 1, (t + 1) & 1
    O, Op = V_O + 16 * z, V_O + 16 * (1 - z)
    ds = "nods" not in EXP
    c_, u = t >> 3, t & 7
    nt = (t + 1) & 63
    noff = ((nt >> 3) % NSLOT) * SLOTB + (nt & 7) * TILEB
    last = t == 63

    def e(i):
        k.I(f"v_exp_f32 {v(S + i)}, {v(S + i)}")

    def c(j):
        k.I(f"v_cvt_pk_bf16_f32 {v(V_P + j)}, {v(S + 2 * j)}, {v(S + 2 * j + 1)}")

    def dma_spot(n):
        if "nobar" in EXP or z == 0:
            return
        if u == 7 and c_ + 2 <= 7:
            dma_one(k, c_ + 2, n)
        if u == 0 and 1 <= c_ and c_ + 1 <= 7:
            dma_one(k, c_ + 1, 2 + n)

    e(0)
    e(1)
    k.I(f"v_cvt_pk_bf16_f32 {v(V_P + 7)}, {v(Sn + 14)}, {v(Sn + 15)}")
    e(2)
    e(3)
    mfma(k, Op, V_V + 8 * (nb if z == 0 else b) + 4, V_P + 4, v(Op, 16))
    if z == 0:
        if ds and not last:
            k.I(f"ds_read_b128 {v(V_K + 4 * nb, 4)}, {v(V_AK)} offset:{noff}")
    else:
        if "nowait" not in EXP:
            k.I("s_waitcnt lgkmcnt(0)")
    c(0)
    e(4)
    e(5)
    c(1)
    e(6)
    e(7)
    if z == 0:
        mfma(k, Sn, V_K + 4 * b, V_Q + 4, v(V_CN + 16, 16))
        if ds and not last:
            k.I(f"ds_read_b128 {v(V_V + 8 * nb, 4)}, {v(V_A0)} offset:{noff}")
    elif not last:
        mfma(k, Sn, V_K + 4 * nb, V_Q, v(V_CN, 16))
        if u == 6 and c_ < 7 and "nobar" not in EXP:
            k.I("s_waitcnt vmcnt(0)")
            k.I("s_barrier")
        dma_spot(0)
    c(2)
    e(8)
    e(9)
    c(3)
    e(10)
    e(11)
    mfma(k, O, V_V + 8 * b, V_P, v(O, 16))
    if z == 0 and ds and not last:
        k.I(f"ds_read_b128 {v(V_V + 8 * nb + 4, 4)}, {v(V_A1)} offset:{noff}")
    dma_spot(1)
    c(4)
    e(12)
    e(13)
    c(5)
    e(14)
    e(15)
    c(6)


def gen_role(k, P="A"):
    T = V_T
    k.I(f"""
    s_load_dwordx2 {s(S_WS, 2)}, s[0:1], {KA_WS}
    v_lshrrev_b32 v1, 6, v0
    v_and_b32 v0, 63, v0
    s_and_b32 {s(S_T0)}, s2, 7
    v_readfirstlane_b32 {s(S_WAVE)}, v1
    s_lshl_b32 {s(S_T0)}, {s(S_T0)}, 2
    s_bfe_u32 {s(S_T1)}, s2, 0x20003
    s_add_u32 {s(S_HEAD)}, {s(S_T0)}, {s(S_T1)}
    s_bfe_u32 {s(S_JB)}, s2, 0x30005
    v_lshlrev_b32 {v(V_L16)}, 4, v0
    s_mul_i32 {s(S_LW)}, {s(S_WAVE)}, {TILEB}
    s_lshl_b32 {s(S_GO0)}, {s(S_HEAD)}, 6
    s_add_u32 {s(S_GO0)}, {s(S_GO0)}, {s(S_WAVE)}
    s_lshl_b32 {s(S_GO0)}, {s(S_GO0)}, 11
    s_mov_b32 {s(S_PASS)}, 0
    s_waitcnt lgkmcnt(0)
    """)
    stamp(k, 0)
    srd(k, S_KV, S_WS, 4 << 20, KVF)
    srd(k, S_Q, S_WS, 2 << 20, QF)
    srd(k, S_O, S_WS, 2 << 20, OF)
    k.I(f"""
    s_mov_b32 {s(S_GO)}, {s(S_GO0)}
    s_mov_b32 {s(S_DMA)}, 0
    """)
    dma_chunk(k)
    k.I(f"s_mov_b32 {s(S_DMA)}, {SLOTB}")
    dma_chunk(k)
    load_q(k)
    k.I(f"""
    v_lshrrev_b32 {v(T)}, 5, v0
    v_lshlrev_b32 {v(T)}, 8, {v(T)}
    v_and_b32 {v(T + 1)}, 15, v0
    v_lshl_add_u32 {v(T)}, {v(T + 1)}, 4, {v(T)}
    v_add_u32 {v(T)}, 1024, {v(T)}
    v_mov_b32 {v(T + 2)}, {2048 + 16}
    v_add_u32 {v(T + 3)}, -4, {v(T + 1)}
    v_cmp_gt_u32 vcc, 8, {v(T + 3)}
    v_mov_b32 {v(T + 4)}, {2048 + 80}
    s_nop 0
    v_cndmask_b32 {v(T + 2)}, {v(T + 2)}, {v(T + 4)}, vcc
    v_cmp_eq_u32 vcc, 0, {v(T + 1)}
    v_mov_b32 {v(T + 4)}, 2048
    s_nop 0
    v_cndmask_b32 {v(T + 2)}, {v(T + 2)}, {v(T + 4)}, vcc
    v_cmp_eq_u32 vcc, 4, {v(T + 1)}
    v_mov_b32 {v(T + 4)}, {2048 + 64}
    s_nop 0
    v_cndmask_b32 {v(T + 2)}, {v(T + 2)}, {v(T + 4)}, vcc
    v_and_b32 {v(T + 3)}, 16, v0
    v_cmp_eq_u32 vcc, 0, {v(T + 3)}
    v_add_u32 {v(T + 4)}, 512, {v(T)}
    s_nop 0
    v_cndmask_b32 {v(V_VA)}, {v(T + 2)}, {v(T)}, vcc
    v_cndmask_b32 {v(V_VA + 1)}, {v(T + 2)}, {v(T + 4)}, vcc
    """)
    k.I(f"""
    v_and_b32 {v(T + 1)}, 11, v0
    v_cmp_eq_u32 vcc, 0, {v(T + 1)}
    v_mov_b32 {v(T + 1)}, 0x3f803f80
    v_mov_b32 {v(T + 5)}, {L_FLAG}
    v_cndmask_b32 {v(T)}, 0, {v(T + 1)}, vcc
    v_mov_b32 {v(T + 1)}, {v(T)}
    v_mov_b32 {v(T + 2)}, {v(T)}
    v_mov_b32 {v(T + 3)}, {v(T)}
    v_add_u32 {v(T + 4)}, {s(S_LW)}, {v(V_L16)}
    v_mov_b32 {v(T + 6)}, 0
    s_mov_b64 exec, 0xffff
    """)
    for sl in range(NSLOT):
        for tt in range(2):
            k.I(f"ds_write_b128 {v(T + 4)}, {v(T, 4)} offset:{sl * SLOTB + tt * 4 * TILEB + 2048}")
    k.I(f"""
    ds_write_b32 {v(T + 5)}, {v(T + 6)}
    s_mov_b64 exec, -1
    """)
    for i in range(32):
        k.I(f"v_mov_b32 {v(V_CN + i)}, 0")
    k.L(f"{P}_PASS")
    for i in range(32):
        k.I(f"v_mov_b32 {v(V_O + i)}, 0")
    for i in range(8):
        k.I(f"v_mov_b32 {v(V_P + i)}, 0")
    for i in range(4):
        k.I(f"v_mov_b32 {v(V_V + 8 + 4 + i)}, 0")
    k.I(f"""
    v_mov_b32 {v(V_S + 16 + 14)}, 0
    v_mov_b32 {v(V_S + 16 + 15)}, 0
    v_mov_b32 {v(V_AK)}, {v(V_L16)}
    s_waitcnt vmcnt(6) lgkmcnt(0)
    """)
    k.I("s_barrier")
    stamp(k, 1)
    k.I(f"""
    ds_read_b128 {v(V_K, 4)}, {v(V_AK)}
    ds_read_b128 {v(V_V, 4)}, {v(V_A0)}
    ds_read_b128 {v(V_V + 4, 4)}, {v(V_A1)}
    s_waitcnt vmcnt(0) lgkmcnt(0)
    """)
    mfma(k, V_S, V_K, V_Q, v(V_CN, 16))
    k.nop(12)
    for t in range(64):
        for z in range(2):
            subtile(k, t, z)
    stamp(k, 2)
    k.I(f"v_cvt_pk_bf16_f32 {v(V_P + 7)}, {v(V_S + 16 + 14)}, {v(V_S + 16 + 15)}")
    k.nop(2)
    mfma(k, V_O + 16, V_V + 8 + 4, V_P + 4, v(V_O + 16, 16))
    k.nop(12)
    k.I(f"""
    v_rcp_f32 {v(T)}, {v(V_O + 8)}
    v_rcp_f32 {v(T + 1)}, {v(V_O + 16 + 8)}
    s_cmp_lg_u32 {s(S_PASS)}, {1 if EXP else 0}
    s_cbranch_scc1 {P}_STORE
    v_mul_f32 {v(T + 2)}, 0, {v(V_O + 8)}
    """)
    for z in range(2):
        for i in range(9):
            if z == 0 and i == 8:
                continue
            k.I(f"v_fma_f32 {v(T + 2)}, {v(V_O + 16 * z + i)}, 0, {v(T + 2)}")
    k.I(f"""
    v_cmp_u_f32 vcc, {v(T + 2)}, {v(T + 2)}
    s_mov_b64 {s(S_EX, 2)}, vcc
    v_min_f32 {v(T + 2)}, {v(V_O + 8)}, {v(V_O + 16 + 8)}
    v_mov_b32 {v(T + 3)}, {hx(f2u(2.0 ** -40))}
    v_cmp_nge_f32 vcc, {v(T + 2)}, {v(T + 3)}
    s_or_b64 vcc, vcc, {s(S_EX, 2)}
    s_cbranch_vccz {P}_OK
    v_mov_b32 {v(T + 2)}, {L_FLAG}
    v_mov_b32 {v(T + 3)}, 1
    ds_write_b32 {v(T + 2)}, {v(T + 3)}
    """)
    k.L(f"{P}_OK")
    k.I(f"""
    s_waitcnt lgkmcnt(0)
    s_barrier
    v_mov_b32 {v(T + 2)}, {L_FLAG}
    ds_read_b32 {v(T + 3)}, {v(T + 2)}
    s_waitcnt lgkmcnt(0)
    v_readfirstlane_b32 {s(S_T0)}, {v(T + 3)}
    s_cmp_lg_u32 {s(S_T0)}, 0
    s_cbranch_scc1 {P}_SLOW
    """)
    k.L(f"{P}_STORE")
    k.I(f"""
    s_lshl_b32 {s(S_T0)}, {s(S_JB)}, 3
    s_lshl_b32 {s(S_T1)}, {s(S_WAVE)}, 1
    s_add_u32 {s(S_T0)}, {s(S_T0)}, {s(S_T1)}
    s_lshl_b32 {s(S_T0)}, {s(S_T0)}, 5
    s_add_u32 {s(S_T0)}, {s(S_T0)}, {s(S_HEAD)}
    s_lshl_b32 {s(S_T0)}, {s(S_T0)}, 10
    """)
    for z in range(2):
        for i in range(8):
            k.I(f"v_mul_f32 {v(V_O + 16 * z + i)}, {v(V_O + 16 * z + i)}, {v(T + z)}")
        for i in range(4):
            k.I(f"v_cvt_pk_bf16_f32 {v(V_P + 4 * z + i)}, {v(V_O + 16 * z + 2 * i)}, {v(V_O + 16 * z + 2 * i + 1)}")
        k.I(f"buffer_store_dwordx4 {v(V_P + 4 * z, 4)}, {v(V_L16)}, {s(S_O, 4)}, {s(S_T0)} offen {common.O_STORE_MODS}")
        if z == 0:
            k.I(f"s_add_u32 {s(S_T0)}, {s(S_T0)}, {32 * 1024}")
    k.L(f"{P}_DONE")


def gen_slow(k, P="A"):
    k.L(f"{P}_SLOW")
    M = V_T + 4
    k.I(f"""
    s_mov_b32 {s(S_PASS)}, 1
    v_mov_b32 {v(M)}, 0xff800000
    v_mov_b32 {v(M + 1)}, 0xff800000
    s_mov_b32 {s(S_GO)}, {s(S_GO0)}
    s_mov_b32 {s(S_CNT)}, 0
    """)
    k.L(f"{P}_SLOW_C")
    k.I(f"""
    s_barrier
    s_mov_b32 {s(S_DMA)}, 0
    """)
    dma_chunk(k)
    k.I(f"""
    s_waitcnt vmcnt(0)
    s_barrier
    v_mov_b32 {v(V_AK)}, {v(V_L16)}
    s_mov_b32 {s(S_T1)}, 0
    """)
    k.L(f"{P}_SLOW_T")
    k.I(f"""
    ds_read_b128 {v(V_K, 4)}, {v(V_AK)}
    s_waitcnt lgkmcnt(0)
    """)
    mfma(k, V_S, V_K, V_Q, "0")
    mfma(k, V_S + 16, V_K, V_Q + 4, "0")
    k.I(f"v_add_u32 {v(V_AK)}, {TILEB}, {v(V_AK)}")
    k.nop(12)
    for z in range(2):
        for i in range(8):
            k.I(f"v_max3_f32 {v(M + z)}, {v(V_S + 16 * z + 2 * i)}, {v(V_S + 16 * z + 2 * i + 1)}, {v(M + z)}")
    k.I(f"""
    s_add_u32 {s(S_T1)}, {s(S_T1)}, 1
    s_cmp_lt_u32 {s(S_T1)}, 8
    s_cbranch_scc1 {P}_SLOW_T
    s_add_u32 {s(S_CNT)}, {s(S_CNT)}, 1
    s_cmp_lt_u32 {s(S_CNT)}, 8
    s_cbranch_scc1 {P}_SLOW_C
    """)
    for z in range(2):
        k.I(f"v_mov_b32 {v(M + 2)}, {v(M + z)}")
        k.nop(2)
        k.I(f"""
        v_permlane32_swap_b32 {v(M + 2)}, {v(M + z)}
        v_max_f32 {v(M + z)}, {v(M + z)}, {v(M + 2)}
        """)
        for i in range(16):
            k.I(f"v_sub_f32 {v(V_CN + 16 * z + i)}, 0, {v(M + z)}")
    k.I(f"""
    s_barrier
    s_mov_b32 {s(S_GO)}, {s(S_GO0)}
    s_mov_b32 {s(S_DMA)}, 0
    """)
    dma_chunk(k)
    k.I(f"s_mov_b32 {s(S_DMA)}, {SLOTB}")
    dma_chunk(k)
    load_q(k)
    k.I(f"s_branch {P}_PASS")


NAME = "k2a_kernel"
BLOCK = 256


def gen():
    k = Asm()
    kernel_header(k, NAME)
    k.I("""
    s_cmp_ge_u32 s2, 256
    s_cbranch_scc1 K2A_END
    """)
    gen_role(k)
    stamp_flush(k, 3, S_WS, S_WAVE, 1)
    k.L("K2A_END")
    k.I("s_endpgm")
    gen_slow(k)
    return k


TAKES = [{}, {"A_SLOW": [True, False], "A_STORE": [False, True]}, {"A_OK": True}]
```

```python
import sys, importlib
sys.path.insert(0, "gen")
from common import *

HEADER = open("gated_mix__softmax_full_mha__mixer_s_mlp__prompt.s.ref").read().split("; Override launch geometry")[0]

def build(kernels, out_path, check=True):
    txt = HEADER
    for kd in kernels:
        txt += f"; @launch kernel={kd['name']} grid=({kd['grid']},1,1) block=({kd['block']},1,1) lds={kd['lds']}\n"
    txt += '.amdgcn_target "amdgcn-amd-amdhsa--gfx950"\n.text\n'
    seen = set()
    nerr = 0
    for kd in kernels:
        if kd['name'] in seen: continue
        seen.add(kd['name'])
        body = kd['asm'].text()
        if check:
            errs = check_kernel(body, kd['name'], takes=kd.get('takes', [{}]))
            for e in errs: print(e)
            nerr += len(errs)
        txt += body
    txt += '.section .rodata,"a"\n'
    seen = set()
    for kd in kernels:
        if kd['name'] in seen: continue
        seen.add(kd['name'])
        txt += kernel_desc(kd['name'], kd['vgpr'], kd.get('sgpr', 96))
    open(out_path, "w").write(txt)
    print("wrote", out_path, len(txt), "bytes;", nerr, "checker findings")
    return nerr
```

```python
import struct
from asmlib import *

QF = 0
KVF = 2 << 20
HSF = 6 << 20
X1F = 8 << 20
OF = 10 << 20
PART = 12 << 20
GOFF = 28 << 20
STOFF = GOFF + 65536
CS3 = STOFF + (2048 * 128)
FLAGS = 29 << 20
WS_USED = 30 << 20

KA_X, KA_WQKV, KA_WO, KA_BX, KA_W1, KA_W2, KA_W3, KA_W4, KA_GATE, KA_OUT, KA_DBG, KA_WS = [8 * i for i in range(12)]

SRD3 = 0x00020000


def f2u(x):
    return struct.unpack("<I", struct.pack("<f", x))[0]


def hx(x):
    return f"0x{x & 0xffffffff:x}"


def srd(k, dst, base_lo, nbytes, add=0):
    if add:
        k.I(f"s_add_u32 {s(dst)}, {s(base_lo)}, {hx(add)}")
        k.I(f"s_addc_u32 {s(dst + 1)}, {s(base_lo + 1)}, 0")
    else:
        k.I(f"s_mov_b32 {s(dst)}, {s(base_lo)}")
        k.I(f"s_mov_b32 {s(dst + 1)}, {s(base_lo + 1)}")
    k.I(f"s_mov_b32 {s(dst + 2)}, {hx(nbytes)}")
    k.I(f"s_mov_b32 {s(dst + 3)}, {hx(SRD3)}")


def kernel_header(k, name):
    k.raw(f".globl {name}\n.p2align 8\n.type {name},@function")
    k.L(name)


def kernel_desc(name, vgpr, sgpr=96, accum=None):
    accum = accum if accum is not None else ((vgpr + 3) // 4) * 4
    return f""".p2align 6
.amdhsa_kernel {name}
  .amdhsa_next_free_vgpr {vgpr}
  .amdhsa_next_free_sgpr {sgpr}
  .amdhsa_accum_offset {accum}
  .amdhsa_group_segment_fixed_size 0
  .amdhsa_kernarg_size 96
  .amdhsa_user_sgpr_count 2
  .amdhsa_user_sgpr_kernarg_segment_ptr 1
  .amdhsa_system_sgpr_workgroup_id_x 1
  .amdhsa_float_denorm_mode_32 3
.end_amdhsa_kernel
"""


def sum_halves(k, val, tmp):
    k.I(f"v_mov_b32 {v(tmp)}, {v(val)}")
    k.nop(2)
    k.I(f"v_permlane32_swap_b32 {v(tmp)}, {v(val)}")
    k.I(f"v_add_f32 {v(val)}, {v(val)}, {v(tmp)}")


LOG2E = 1.4426950408889634
GELU_C0 = -2.0 * 0.7978845608028654 * LOG2E
GELU_C1 = GELU_C0 * 0.044715


def gelu_pairs(k, pairs, tmp, c0pair, c1pair):
    n = len(pairs)
    for i, y in enumerate(pairs):
        k.I(f"v_pk_mul_f32 {v(tmp + 2 * i, 2)}, {v(y, 2)}, {v(y, 2)}")
    for i, y in enumerate(pairs):
        k.I(f"v_pk_fma_f32 {v(tmp + 2 * i, 2)}, {v(tmp + 2 * i, 2)}, {s(c1pair, 2)}, {v(c0pair, 2)}")
    for i, y in enumerate(pairs):
        k.I(f"v_pk_mul_f32 {v(tmp + 2 * i, 2)}, {v(tmp + 2 * i, 2)}, {v(y, 2)}")
    for i in range(2 * n):
        k.I(f"v_exp_f32 {v(tmp + i)}, {v(tmp + i)}")
    for i in range(n):
        k.I(f"v_pk_add_f32 {v(tmp + 2 * i, 2)}, {v(tmp + 2 * i, 2)}, 1.0 op_sel_hi:[1,0]")
    for i in range(2 * n):
        k.I(f"v_rcp_f32 {v(tmp + i)}, {v(tmp + i)}")
    for i, y in enumerate(pairs):
        k.I(f"v_pk_mul_f32 {v(y, 2)}, {v(y, 2)}, {v(tmp + 2 * i, 2)}")


PROF = 40 << 20
PROF_ON = False
S_ST = 64


def stamp(k, i):
    if PROF_ON:
        k.I(f"s_memrealtime {s(S_ST + 2 * i, 2)}")
        if i == 0:
            k.I("s_memtime s[88:89]")
        k.I("s_waitcnt lgkmcnt(0)")


def stamp_flush(k, n, ws_pair, wave_s, kid):
    if not PROF_ON:
        return
    k.I("s_waitcnt vmcnt(0) lgkmcnt(0)")
    k.I(f"s_memrealtime {s(S_ST + 2 * n, 2)}")
    k.I(f"s_memtime {s(S_ST + 2 * n + 2, 2)}")
    k.I("s_waitcnt lgkmcnt(0)")
    k.I(f"s_sub_u32 {s(S_ST + 2 * n + 2)}, {s(S_ST + 2 * n + 2)}, s88")
    srd(k, 92, ws_pair, 1 << 20, PROF + kid * (1 << 20))
    k.I(f"s_lshl_b32 s90, s2, 4")
    k.I(f"s_add_u32 s90, s90, {s(wave_s)}")
    k.I(f"s_lshl_b32 s90, s90, 6")
    k.I("s_mov_b64 exec, 1")
    for i in range(n + 2):
        k.I(f"v_mov_b32 v120, {s(S_ST + 2 * i)}")
        k.I(f"v_mov_b32 v121, {4 * i}")
        k.I(f"buffer_store_dword v120, v121, s[92:95], s90 offen")
        k.I("s_nop 1")
    k.I("s_waitcnt vmcnt(0)")

O_STORE_MODS = ""
K1_STORE_MODS = ""
B_STORE_MODS = ""
```

```python
from common import *
import common

NAME = "k1_kernel"
SLOT = 32768
L_GATE = 131072
L_STAT = L_GATE + 1024
L_CSUM = L_STAT + 1024
LDS_BYTES = L_CSUM + 512
QSCALE = 0.25 * LOG2E

S_X, S_W, S_O, S_GW, S_GO = 8, 12, 16, 20, 24
S_WS = 28
S_W1P, S_GP = 30, 32
S_RB, S_CB, S_WAVE, S_TYPE = 34, 35, 36, 37
S_RS, S_RS16, S_T0, S_T1, S_T2 = 38, 39, 40, 41, 42
S_XB, S_WCUR, S_LW, S_LDSW = 43, 44, 45, 46
S_OB = 47
S_C1 = 48
S_EX = 50
S_WR, S_WC = 52, 53


def gen():
    k = Asm()
    kernel_header(k, NAME)
    k.I(f"""
    s_cmp_ge_u32 s2, 256
    s_cbranch_scc1 K1_END
    s_load_dwordx4 s[4:7], s[0:1], {KA_X}
    s_load_dwordx2 {s(S_W1P, 2)}, s[0:1], {KA_W1}
    s_load_dwordx2 {s(S_GP, 2)}, s[0:1], {KA_GATE}
    s_load_dwordx2 {s(S_WS, 2)}, s[0:1], {KA_WS}
    v_lshrrev_b32 v1, 6, v0
    v_and_b32 v0, 63, v0
    s_and_b32 {s(S_T0)}, s2, 7
    v_readfirstlane_b32 {s(S_WAVE)}, v1
    s_lshr_b32 {s(S_T1)}, s2, 3
    s_and_b32 {s(S_RB)}, {s(S_T0)}, 3
    s_lshl_b32 {s(S_RB)}, {s(S_RB)}, 2
    s_and_b32 {s(S_T2)}, {s(S_T1)}, 3
    s_add_u32 {s(S_RB)}, {s(S_RB)}, {s(S_T2)}
    s_lshr_b32 {s(S_T0)}, {s(S_T0)}, 2
    s_lshr_b32 {s(S_T2)}, {s(S_T1)}, 2
    s_cmp_lt_u32 {s(S_T1)}, 8
    s_cbranch_scc1 K1_DEC_H
    s_mul_i32 {s(S_CB)}, {s(S_T0)}, 6
    s_add_u32 {s(S_CB)}, {s(S_CB)}, {s(S_T2)}
    s_sub_u32 {s(S_CB)}, {s(S_CB)}, 2
    s_branch K1_DEC_DONE
    """)
    k.L("K1_DEC_H")
    k.I(f"""
    s_lshl_b32 {s(S_CB)}, {s(S_T0)}, 1
    s_add_u32 {s(S_CB)}, {s(S_CB)}, {s(S_T2)}
    s_add_u32 {s(S_CB)}, {s(S_CB)}, 12
    """)
    k.L("K1_DEC_DONE")
    k.I(f"""
    s_lshr_b32 {s(S_TYPE)}, {s(S_CB)}, 2
    s_waitcnt lgkmcnt(0)
    """)
    stamp(k, 0)
    srd(k, S_X, 4, 2048 * 512 * 2)
    k.I(f"""
    s_cmp_eq_u32 {s(S_TYPE)}, 3
    s_cselect_b32 {s(S_W)}, {s(S_W1P)}, s6
    s_cselect_b32 {s(S_W + 1)}, {s(S_W1P + 1)}, s7
    s_mov_b32 {s(S_W + 2)}, {hx(512 * 1536 * 2)}
    s_cselect_b32 {s(S_W + 2)}, {hx(512 * 512 * 2)}, {s(S_W + 2)}
    s_mov_b32 {s(S_W + 3)}, {hx(SRD3)}
    s_mov_b32 {s(S_RS)}, 3072
    s_cselect_b32 {s(S_RS)}, 1024, {s(S_RS)}
    s_cselect_b32 {s(S_T0)}, 12, 0
    s_sub_u32 {s(S_T0)}, {s(S_CB)}, {s(S_T0)}
    s_lshl_b32 {s(S_WCUR)}, {s(S_T0)}, 8
    s_lshl_b32 {s(S_RS16)}, {s(S_RS)}, 4
    s_cmp_ge_u32 {s(S_WAVE)}, 4
    s_cbranch_scc1 K1_LOADER
    """)
    compute(k)
    loader(k)
    k.L("K1_END")
    k.I("s_endpgm")
    return k


V_AX = 4
V_AW = 12
V_FX = 16
V_FW = 32
V_ACC = 48
V_T = 112
V_L31, V_H = 2, 3


def frag_addr_setup(k, rowbase_s, quarter_s_list, ax, aw):
    t0, t1, t2, t3 = V_T, V_T + 1, V_T + 2, V_T + 3
    k.I(f"""
    v_and_b32 {v(V_L31)}, 31, v0
    v_lshrrev_b32 {v(V_H)}, 5, v0
    v_add_u32 {v(t0)}, {s(rowbase_s)}, {v(V_L31)}
    v_lshlrev_b32 {v(t0)}, 7, {v(t0)}
    v_bfe_u32 {v(t1)}, v0, 1, 3
    """)
    for st in range(4):
        k.I(f"""
        v_add_u32 {v(t2)}, {2 * st}, {v(V_H)}
        v_xor_b32 {v(t2)}, {v(t2)}, {v(t1)}
        v_lshl_add_u32 {v(ax + st)}, {v(t2)}, 4, {v(t0)}
        v_add_u32 {v(ax + 4 + st)}, 0x10000, {v(ax + st)}
        """)
    k.I(f"""
    v_bfe_u32 {v(t0)}, v0, 2, 2
    v_lshl_add_u32 {v(t1)}, {v(V_H)}, 3, {v(t0)}
    v_lshlrev_b32 {v(t1)}, 8, {v(t1)}
    v_bfe_u32 {v(t2)}, v0, 4, 1
    v_lshl_add_u32 {v(t1)}, {v(t2)}, 5, {v(t1)}
    v_and_b32 {v(t2)}, 3, v0
    v_lshl_add_u32 {v(t1)}, {v(t2)}, 3, {v(t1)}
    v_add_u32 {v(t1)}, 16384, {v(t1)}
    """)
    n = len(quarter_s_list)
    for i, qs in enumerate(quarter_s_list):
        k.I(f"""
        v_xor_b32 {v(t2)}, {s(qs)}, {v(t0)}
        v_lshl_add_u32 {v(aw + i)}, {v(t2)}, 6, {v(t1)}
        v_add_u32 {v(aw + n + i)}, 0x10000, {v(aw + i)}
        """)


def reads_for(j):
    st, sidx = j // 4, j % 4
    slot = st % 4
    hi = slot // 2
    so = (slot % 2) * SLOT
    b = j & 1
    g1, g2 = [], []
    xa = V_AX + 4 * hi + sidx
    g1.append(f"ds_read_b64_tr_b16 {v(V_FW + 8 * b + 0, 2)}, {v(V_AW + 2 * hi + 0)} offset:{so + sidx * 4096}")
    g1.append(f"ds_read_b64_tr_b16 {v(V_FW + 8 * b + 2, 2)}, {v(V_AW + 2 * hi + 0)} offset:{so + sidx * 4096 + 1024}")
    g1.append(f"ds_read_b128 {v(V_FX + 8 * b + 0, 4)}, {v(xa)} offset:{so}")
    g2.append(f"ds_read_b128 {v(V_FX + 8 * b + 4, 4)}, {v(xa)} offset:{so + 4096}")
    g2.append(f"ds_read_b64_tr_b16 {v(V_FW + 8 * b + 4, 2)}, {v(V_AW + 2 * hi + 1)} offset:{so + sidx * 4096}")
    g2.append(f"ds_read_b64_tr_b16 {v(V_FW + 8 * b + 6, 2)}, {v(V_AW + 2 * hi + 1)} offset:{so + sidx * 4096 + 1024}")
    return g1, g2


def acc(ct, rt):
    return V_ACC + 32 * ct + 16 * rt


def mainloop(k, transposed):
    k.I("s_barrier")
    stamp(k, 1)
    g1, g2 = reads_for(0)
    for t in g1 + g2:
        k.I(t)
    for j in range(32):
        b = j & 1
        st, sidx = j // 4, j % 4

        def mf(ct, rt):
            fw = v(V_FW + 8 * b + 4 * ct, 4)
            fx = v(V_FX + 8 * b + 4 * rt, 4)
            c = "0" if j == 0 else v(acc(ct, rt), 16)
            A, B = (fw, fx) if transposed else (fx, fw)
            k.I(f"v_mfma_f32_32x32x16_bf16 {v(acc(ct, rt), 16)}, {A}, {B}, {c}")

        k.I("s_waitcnt lgkmcnt(0)")
        mf(0, 0)
        if sidx == 3 and st < 7:
            k.I("s_barrier")
        if j + 1 < 32:
            g1, g2 = reads_for(j + 1)
            for t in g1:
                k.I(t)
        mf(0, 1)
        if j + 1 < 32:
            for t in g2:
                k.I(t)
        mf(1, 0)
        mf(1, 1)
        if j == 15:
            stamp(k, 2)
    stamp(k, 3)


def compute(k):
    k.I(f"""
    s_lshr_b32 {s(S_WR)}, {s(S_WAVE)}, 1
    s_and_b32 {s(S_WC)}, {s(S_WAVE)}, 1
    s_lshl_b32 {s(S_T0)}, {s(S_WR)}, 6
    s_lshl_b32 {s(S_T1)}, {s(S_WC)}, 1
    s_add_u32 {s(S_T2)}, {s(S_T1)}, 1
    """)
    frag_addr_setup(k, S_T0, [S_T1, S_T2], V_AX, V_AW)
    k.I(f"""
    s_cmp_eq_u32 {s(S_TYPE)}, 2
    s_cbranch_scc1 K1_VTYPE
    """)
    mainloop(k, True)
    k.I(f"""
    s_cmp_eq_u32 {s(S_TYPE)}, 3
    s_cbranch_scc1 K1_EPI_H
    """)
    k.I(f"""
    s_and_b32 {s(S_T0)}, {s(S_CB)}, 3
    s_lshl_b32 {s(S_T0)}, {s(S_T0)}, 3
    s_lshl_b32 {s(S_T1)}, {s(S_WC)}, 2
    s_add_u32 {s(S_T0)}, {s(S_T0)}, {s(S_T1)}
    s_lshl_b32 {s(S_T0)}, {s(S_T0)}, 6
    s_lshl_b32 {s(S_T1)}, {s(S_RB)}, 2
    s_add_u32 {s(S_T0)}, {s(S_T0)}, {s(S_T1)}
    s_lshl_b32 {s(S_T1)}, {s(S_WR)}, 1
    s_add_u32 {s(S_OB)}, {s(S_T0)}, {s(S_T1)}
    v_lshlrev_b32 v1, 4, v0
    s_cmp_eq_u32 {s(S_TYPE)}, 0
    s_cbranch_scc0 K1_EPI_K
    """)
    srd(k, S_O, S_WS, 2 << 20, QF)
    k.I(f"""
    s_lshl_b32 {s(S_OB)}, {s(S_OB)}, 10
    s_mov_b32 {s(S_C1)}, {hx(f2u(QSCALE))}
    s_mov_b32 {s(S_C1 + 1)}, {hx(f2u(QSCALE))}
    """)
    k.nop(4)
    n = 0
    for ct in range(2):
        for rt in range(2):
            for hf in range(2):
                A = acc(ct, rt) + 8 * hf
                T = V_T + 8 * (n & 1)
                for i in range(4):
                    k.I(f"v_pk_mul_f32 {v(A + 2 * i, 2)}, {v(A + 2 * i, 2)}, {s(S_C1, 2)}")
                for i in range(4):
                    k.I(f"v_cvt_pk_bf16_f32 {v(T + i)}, {v(A + 2 * i)}, {v(A + 2 * i + 1)}")
                k.I(f"s_add_u32 {s(S_T0)}, {s(S_OB)}, {((2 * ct + hf) * 64 + rt) * 1024}")
                k.I(f"buffer_store_dwordx4 {v(T, 4)}, v1, {s(S_O, 4)}, {s(S_T0)} offen {common.K1_STORE_MODS}")
                n += 1
    stamp_flush(k, 4, S_WS, S_WAVE, 0)
    k.I("s_endpgm")
    k.L("K1_EPI_K")
    srd(k, S_O, S_WS, 4 << 20, KVF)
    k.I(f"s_lshl_b32 {s(S_OB)}, {s(S_OB)}, 11")
    k.nop(4)
    n = 0
    for ct in range(2):
        for rt in range(2):
            for hf in range(2):
                A = acc(ct, rt) + 8 * hf
                T = V_T + 8 * (n & 1)
                for i in range(4):
                    k.I(f"v_cvt_pk_bf16_f32 {v(T + i)}, {v(A + 2 * i)}, {v(A + 2 * i + 1)}")
                k.I(f"s_add_u32 {s(S_T0)}, {s(S_OB)}, {((2 * ct + hf) * 64 + rt) * 2048}")
                k.I(f"buffer_store_dwordx4 {v(T, 4)}, v1, {s(S_O, 4)}, {s(S_T0)} offen {common.K1_STORE_MODS}")
                n += 1
    stamp_flush(k, 4, S_WS, S_WAVE, 0)
    k.I("s_endpgm")

    k.L("K1_VTYPE")
    mainloop(k, False)
    srd(k, S_O, S_WS, 4 << 20, KVF)
    k.I(f"""
    s_and_b32 {s(S_T0)}, {s(S_CB)}, 3
    s_lshl_b32 {s(S_T0)}, {s(S_T0)}, 3
    s_lshl_b32 {s(S_T1)}, {s(S_WC)}, 2
    s_add_u32 {s(S_T0)}, {s(S_T0)}, {s(S_T1)}
    s_lshl_b32 {s(S_T0)}, {s(S_T0)}, 6
    s_lshl_b32 {s(S_T1)}, {s(S_RB)}, 2
    s_add_u32 {s(S_T0)}, {s(S_T0)}, {s(S_T1)}
    s_lshl_b32 {s(S_T1)}, {s(S_WR)}, 1
    s_add_u32 {s(S_OB)}, {s(S_T0)}, {s(S_T1)}
    s_lshl_b32 {s(S_OB)}, {s(S_OB)}, 11
    v_bfe_u32 v1, v0, 4, 1
    v_lshlrev_b32 v1, 17, v1
    v_lshl_add_u32 v1, {v(V_H)}, 8, v1
    v_and_b32 {v(V_T)}, 15, v0
    v_lshl_add_u32 v1, {v(V_T)}, 4, v1
    v_add_u32 v1, 1024, v1
    """)
    n = 0
    for ct in range(2):
        for rt in range(2):
            for st in range(2):
                A = acc(ct, rt) + 8 * st
                T = V_T + 8 * (n & 1)
                for i in range(4):
                    k.I(f"v_cvt_pk_bf16_f32 {v(T + i)}, {v(A + 2 * i)}, {v(A + 2 * i + 1)}")
                k.I(f"s_add_u32 {s(S_T0)}, {s(S_OB)}, {(2 * ct * 64 + rt) * 2048}")
                k.I(f"buffer_store_dwordx4 {v(T, 4)}, v1, {s(S_O, 4)}, {s(S_T0)} offen offset:{st * 512} {common.K1_STORE_MODS}")
                n += 1
    stamp_flush(k, 4, S_WS, S_WAVE, 0)
    k.I("s_endpgm")

    k.L("K1_EPI_H")
    V_MU = 16
    V_CS = 20
    V_RO = 36
    V_ZM = 38
    V_C0 = 40
    srd(k, S_O, S_WS, 2 << 20, HSF)
    k.I("s_barrier")
    k.I(f"""
    s_lshl_b32 {s(S_T0)}, {s(S_WR)}, 6
    v_add_u32 {v(V_T)}, {s(S_T0)}, {v(V_L31)}
    v_lshlrev_b32 {v(V_T + 1)}, 3, {v(V_T)}
    v_add_u32 {v(V_T + 1)}, {L_STAT}, {v(V_T + 1)}
    ds_read_b64 {v(V_MU, 2)}, {v(V_T + 1)}
    ds_read_b64 {v(V_MU + 2, 2)}, {v(V_T + 1)} offset:256
    s_lshl_b32 {s(S_T1)}, {s(S_WC)}, 8
    s_add_u32 {s(S_T1)}, {s(S_T1)}, {L_CSUM}
    v_lshlrev_b32 {v(V_T + 2)}, 4, {v(V_H)}
    v_add_u32 {v(V_T + 2)}, {s(S_T1)}, {v(V_T + 2)}
    v_mov_b32 {v(V_C0)}, {hx(f2u(GELU_C0))}
    v_mov_b32 {v(V_C0 + 1)}, {hx(f2u(GELU_C0))}
    s_mov_b32 {s(S_C1)}, {hx(f2u(GELU_C1))}
    s_mov_b32 {s(S_C1 + 1)}, {hx(f2u(GELU_C1))}
    """)
    k.I(f"""
    s_sub_u32 {s(S_T1)}, {s(S_CB)}, 12
    s_lshr_b32 {s(S_T2)}, {s(S_T1)}, 1
    s_add_u32 {s(S_T2)}, {s(S_T2)}, 1
    s_sub_u32 {s(S_T0)}, 0, {s(S_T2)}
    s_bitcmp1_b32 {s(S_T1)}, 0
    s_cselect_b32 {s(S_T2)}, {s(S_T0)}, {s(S_T2)}
    s_lshl_b32 {s(S_T0)}, {s(S_RB)}, 7
    s_add_u32 {s(S_T0)}, {s(S_T0)}, {s(S_T2)}
    s_lshl_b32 {s(S_T1)}, {s(S_T1)}, 3
    s_lshl_b32 {s(S_T2)}, {s(S_WC)}, 2
    s_add_u32 {s(S_T1)}, {s(S_T1)}, {s(S_T2)}
    s_lshl_b32 {s(S_OB)}, {s(S_T1)}, 10
    v_add_u32 {v(V_T)}, {s(S_T0)}, {v(V_T)}
    """)
    S_ZM = 54
    for rt in range(2):
        r = V_T + 3
        k.I(f"""
        v_add_u32 {v(r)}, {32 * rt}, {v(V_T)}
        v_cmp_gt_u32 vcc, 0x800, {v(r)}
        s_mov_b64 {s(S_ZM + 2 * rt, 2)}, vcc
        v_and_b32 {v(r)}, 0x7ff, {v(r)}
        v_lshrrev_b32 {v(r + 1)}, 5, {v(r)}
        v_lshlrev_b32 {v(r + 1)}, 15, {v(r + 1)}
        v_and_b32 {v(r)}, 31, {v(r)}
        v_lshl_add_u32 {v(r)}, {v(V_H)}, 5, {v(r)}
        v_lshl_add_u32 {v(V_RO + rt)}, {v(r)}, 4, {v(r + 1)}
        """)
    n = 0
    for ct in range(2):
        for q in range(4):
            k.I(f"ds_read_b128 {v(V_CS + 4 * q, 4)}, {v(V_T + 2)} offset:{ct * 128 + q * 32}")
        k.I("s_waitcnt lgkmcnt(0)")
        for rt in range(2):
            A = acc(ct, rt)
            mu = V_MU + 2 * rt
            for i in range(8):
                k.I(f"v_pk_fma_f32 {v(A + 2 * i, 2)}, {v(mu, 2)}, {v(V_CS + 2 * i, 2)}, {v(A + 2 * i, 2)} op_sel_hi:[0,1,1] neg_lo:[1,0,0] neg_hi:[1,0,0]")
            for i in range(8):
                k.I(f"v_pk_mul_f32 {v(A + 2 * i, 2)}, {v(A + 2 * i, 2)}, {v(mu, 2)} op_sel:[0,1] op_sel_hi:[1,1]")
            gelu_pairs(k, [A + 2 * i for i in range(8)], V_T + 8, V_C0, S_C1)
            for hf in range(2):
                T = V_T + 24 + 4 * (n & 1)
                for i in range(4):
                    k.I(f"v_cvt_pk_bf16_f32 {v(T + i)}, {v(A + 8 * hf + 2 * i)}, {v(A + 8 * hf + 2 * i + 1)}")
                for i in range(4):
                    k.I(f"v_cndmask_b32 {v(T + i)}, 0, {v(T + i)}, {s(S_ZM + 2 * rt, 2)}")
                k.I(f"s_add_u32 {s(S_T0)}, {s(S_OB)}, {(2 * ct + hf) * 1024}")
                k.I(f"buffer_store_dwordx4 {v(T, 4)}, {v(V_RO + rt)}, {s(S_O, 4)}, {s(S_T0)} offen {common.K1_STORE_MODS}")
                n += 1
    stamp_flush(k, 4, S_WS, S_WAVE, 0)
    k.I("s_endpgm")


def loader(k):
    V_VX, V_VW = 4, 5
    k.L("K1_LOADER")
    k.I(f"""
    s_sub_u32 {s(S_LW)}, {s(S_WAVE)}, 4
    s_lshl_b32 {s(S_LDSW)}, {s(S_LW)}, 10
    s_lshl_b32 {s(S_XB)}, {s(S_RB)}, 17
    v_lshrrev_b32 v1, 3, v0
    v_lshlrev_b32 {v(V_VX)}, 10, v1
    v_lshrrev_b32 v1, 4, v0
    s_and_b32 {s(S_T0)}, {s(S_LW)}, 1
    s_lshl_b32 {s(S_T0)}, {s(S_T0)}, 2
    v_add_u32 v2, {s(S_T0)}, v1
    v_and_b32 v3, 7, v0
    v_xor_b32 v2, v2, v3
    v_lshl_add_u32 {v(V_VX)}, v2, 4, {v(V_VX)}
    s_lshl_b32 {s(S_T0)}, {s(S_LW)}, 13
    v_add_u32 {v(V_VX)}, {s(S_T0)}, {v(V_VX)}
    v_mul_lo_u32 {v(V_VW)}, v1, {s(S_RS)}
    v_lshlrev_b32 v2, 2, v1
    v_and_b32 v3, 15, v0
    v_xor_b32 v2, v2, v3
    v_lshl_add_u32 {v(V_VW)}, v2, 4, {v(V_VW)}
    s_mul_i32 {s(S_T0)}, {s(S_LW)}, {s(S_RS)}
    s_lshl_b32 {s(S_T0)}, {s(S_T0)}, 2
    v_add_u32 {v(V_VW)}, {s(S_T0)}, {v(V_VW)}
    """)

    def issue(st):
        slot = (st % 4) * SLOT
        for m in range(4):
            k.I(f"""
            s_add_u32 m0, {s(S_LDSW)}, {slot + m * 4096}
            s_add_u32 {s(S_T0)}, {s(S_XB)}, {m * 32768 + st * 128}
            buffer_load_dwordx4 {v(V_VX)}, {s(S_X, 4)}, {s(S_T0)} offen lds
            s_add_u32 m0, {s(S_LDSW)}, {slot + 16384 + m * 4096}
            s_nop 0
            buffer_load_dwordx4 {v(V_VW)}, {s(S_W, 4)}, {s(S_WCUR)} offen lds
            s_add_u32 {s(S_WCUR)}, {s(S_WCUR)}, {s(S_RS16)}
            """)

    def loader_loop(work):
        issue(0)
        issue(1)
        stamp(k, 1)
        issued = 1
        for st in range(8):
            k.I(f"s_waitcnt vmcnt({8 * (issued - st)})")
            if st == 0: stamp(k, 2)
            if st == 4: stamp(k, 3)
            k.I("s_barrier")
            if st == 0:
                issue(2)
                issue(3)
                issued = 3
            elif st + 3 <= 7:
                issue(st + 3)
                issued = st + 3
            work(st)

    k.I(f"""
    s_cmp_eq_u32 {s(S_TYPE)}, 3
    s_cbranch_scc1 K1_LOADER_H
    """)
    CSB = 8
    S_JOB = S_OB
    k.I(f"""
    s_sub_u32 {s(S_JOB)}, s2, 64
    s_cmp_eq_u32 {s(S_LW)}, 0
    s_cselect_b32 {s(S_JOB)}, {s(S_JOB)}, 99
    s_cmp_ge_u32 {s(S_JOB)}, 43
    s_cbranch_scc1 K1_NOCS_A
    s_load_dwordx2 {s(S_GP, 2)}, s[0:1], {KA_W3}
    v_lshrrev_b32 v1, 2, v0
    s_mov_b32 {s(S_T0)}, 2752
    v_mul_lo_u32 v1, v1, {s(S_T0)}
    v_and_b32 v2, 3, v0
    v_lshl_add_u32 v1, v2, 4, v1
    s_lshl_b32 {s(S_T1)}, {s(S_JOB)}, 6
    s_waitcnt lgkmcnt(0)
    """)
    srd(k, S_GW, S_GP, 512 * 1376 * 2)
    for i in range(32):
        k.I(f"buffer_load_dwordx4 {v(CSB + 4 * i, 4)}, v1, {s(S_GW, 4)}, {s(S_T1)} offen")
        k.I(f"s_add_u32 {s(S_T1)}, {s(S_T1)}, {16 * 2752}")
    k.L("K1_NOCS_A")
    loader_loop(lambda st: None)
    k.I(f"""
    s_cmp_ge_u32 {s(S_JOB)}, 43
    s_cbranch_scc1 K1_NOCS_B
    """)
    ACC = 136
    k.I("v_mov_b32 v2, 0x00003f80")
    k.I("v_mov_b32 v3, 0x3f800000")
    for i in range(8):
        k.I(f"v_mov_b32 {v(ACC + i)}, 0")
    for i in range(32):
        for d in range(4):
            k.I(f"v_dot2c_f32_bf16 {v(ACC + 2 * d)}, {v(CSB + 4 * i + d)}, v2")
            k.I(f"v_dot2c_f32_bf16 {v(ACC + 2 * d + 1)}, {v(CSB + 4 * i + d)}, v3")
    k.nop(3)
    for rot in (4, 8):
        for i in range(8):
            k.I(f"v_add_f32_dpp {v(ACC + i)}, {v(ACC + i)}, {v(ACC + i)} row_ror:{rot} row_mask:0xf bank_mask:0xf")
        k.nop(2)
    for i in range(8):
        k.I(f"v_mov_b32 {v(CSB + i)}, {v(ACC + i)}")
    k.nop(2)
    for i in range(8):
        k.I(f"v_permlane16_swap_b32 {v(CSB + i)}, {v(ACC + i)}")
    for i in range(8):
        k.I(f"v_add_f32 {v(ACC + i)}, {v(ACC + i)}, {v(CSB + i)}")
    for i in range(8):
        k.I(f"v_mov_b32 {v(CSB + i)}, {v(ACC + i)}")
    k.nop(2)
    for i in range(8):
        k.I(f"v_permlane32_swap_b32 {v(CSB + i)}, {v(ACC + i)}")
    for i in range(8):
        k.I(f"v_add_f32 {v(ACC + i)}, {v(ACC + i)}, {v(CSB + i)}")
    srd(k, S_GO, S_WS, 1376 * 4, CS3)
    k.I(f"""
    v_lshlrev_b32 v1, 5, v0
    s_lshl_b32 {s(S_T0)}, {s(S_JOB)}, 7
    s_mov_b64 exec, 15
    buffer_store_dwordx4 {v(ACC, 4)}, v1, {s(S_GO, 4)}, {s(S_T0)} offen
    buffer_store_dwordx4 {v(ACC + 4, 4)}, v1, {s(S_GO, 4)}, {s(S_T0)} offen offset:16
    s_mov_b64 exec, -1
    """)
    k.L("K1_NOCS_B")
    stamp_flush(k, 4, S_WS, S_WAVE, 0)
    k.I("s_endpgm")

    k.L("K1_LOADER_H")
    AX, AW = 8, 16
    FX, FW, FG = 20, 28, 36
    SX, SQ, GD, CS, ONES = 44, 45, 46, 47, 48
    V_GA = 49
    srd(k, S_GW, S_GP, 1024)
    k.I(f"""
    v_lshlrev_b32 v1, 4, v0
    s_mov_b32 m0, {L_GATE}
    s_nop 0
    buffer_load_dwordx4 v1, {s(S_GW, 4)}, 0 offen lds
    """)
    k.I(f"s_lshl_b32 {s(S_T1)}, {s(S_LW)}, 5")
    frag_addr_setup(k, S_T1, [S_LW], AX, AW)
    k.I(f"""
    v_mov_b32 {v(SX)}, 0
    v_mov_b32 {v(SQ)}, 0
    v_mov_b32 {v(GD)}, 0
    v_mov_b32 {v(CS)}, 0
    v_mov_b32 {v(ONES)}, 0x3f803f80
    v_lshlrev_b32 {v(V_GA)}, 4, {v(V_H)}
    v_add_u32 {v(V_GA)}, {L_GATE}, {v(V_GA)}
    """)

    def sreads(j):
        st, sidx = j // 4, j % 4
        slot = st % 4
        hi = slot // 2
        so = (slot % 2) * SLOT
        b = j & 1
        k.I(f"ds_read_b128 {v(FX + 4 * b, 4)}, {v(AX + 4 * hi + sidx)} offset:{so}")
        k.I(f"ds_read_b64_tr_b16 {v(FW + 4 * b, 2)}, {v(AW + hi)} offset:{so + sidx * 4096}")
        k.I(f"ds_read_b64_tr_b16 {v(FW + 4 * b + 2, 2)}, {v(AW + hi)} offset:{so + sidx * 4096 + 1024}")
        k.I(f"ds_read_b128 {v(FG + 4 * b, 4)}, {v(V_GA)} offset:{j * 32}")

    def stats(st):
        sreads(4 * st)
        for sidx in range(4):
            j = 4 * st + sidx
            b = j & 1
            if sidx < 3:
                sreads(j + 1)
                k.I("s_waitcnt lgkmcnt(4)")
            else:
                k.I("s_waitcnt lgkmcnt(0)")
            for i in range(4):
                k.I(f"v_dot2c_f32_bf16 {v(SX)}, {v(FX + 4 * b + i)}, {v(ONES)}")
                k.I(f"v_dot2c_f32_bf16 {v(SQ)}, {v(FX + 4 * b + i)}, {v(FX + 4 * b + i)}")
                k.I(f"v_dot2c_f32_bf16 {v(GD)}, {v(FX + 4 * b + i)}, {v(FG + 4 * b + i)}")
                k.I(f"v_dot2c_f32_bf16 {v(CS)}, {v(FW + 4 * b + i)}, {v(ONES)}")

    loader_loop(stats)
    k.nop(3)
    T = 52
    for r in (SX, SQ, GD, CS):
        sum_halves(k, r, T)
    k.I(f"""
    v_mul_f32 {v(SX)}, {hx(f2u(1.0 / 512))}, {v(SX)}
    v_mul_f32 {v(SQ)}, {hx(f2u(1.0 / 512))}, {v(SQ)}
    v_fma_f32 {v(SQ)}, -{v(SX)}, {v(SX)}, {v(SQ)}
    v_max_f32 {v(SQ)}, 0, {v(SQ)}
    v_add_f32 {v(SQ)}, {hx(f2u(1e-5))}, {v(SQ)}
    v_rsq_f32 {v(SQ)}, {v(SQ)}
    v_mul_f32 {v(GD)}, {hx(f2u(-LOG2E))}, {v(GD)}
    v_exp_f32 {v(GD)}, {v(GD)}
    s_lshl_b32 {s(S_T1)}, {s(S_LW)}, 5
    v_add_u32 {v(T)}, {s(S_T1)}, {v(V_L31)}
    v_add_f32 {v(GD)}, 1.0, {v(GD)}
    v_rcp_f32 {v(GD)}, {v(GD)}
    v_lshlrev_b32 {v(T + 1)}, 3, {v(T)}
    v_lshlrev_b32 {v(T + 2)}, 2, {v(T)}
    v_add_u32 {v(T + 1)}, {L_STAT}, {v(T + 1)}
    v_add_u32 {v(T + 3)}, {L_CSUM}, {v(T + 2)}
    s_mov_b32 exec_hi, 0
    ds_write_b64 {v(T + 1)}, {v(SX, 2)}
    ds_write_b32 {v(T + 3)}, {v(CS)}
    """)
    srd(k, S_GO, S_WS, 8192, GOFF)
    k.I(f"""
    s_lshl_b32 {s(S_T0)}, {s(S_RB)}, 9
    buffer_store_dword {v(GD)}, {v(T + 2)}, {s(S_GO, 4)}, {s(S_T0)} offen
    s_mov_b64 exec, -1
    s_waitcnt lgkmcnt(0)
    s_barrier
    s_endpgm
    """)


VGPRS = 144

if __name__ == "__main__":
    k = gen()
    errs = check_kernel(k.text(), NAME, takes=[{}, {"K1_DEC_H": True, "K1_EPI_H": True}, {"K1_EPI_K": True}, {"K1_VTYPE": True},
                                               {"K1_LOADER": True}, {"K1_LOADER": True, "K1_LOADER_H": True}])
    for e in errs:
        print(e)
    print(len(k.lines), "lines", len(errs), "errors")
```

```python
from common import *
import common

BLOCK = 256
LDS_BYTES = 81920

S_A, S_W, S_O, S_X, S_U = 8, 12, 16, 20, 24
S_WS = 28
S_G, S_C, S_WAVE = 30, 31, 32
S_RT, S_KH = 33, 34
S_T0, S_T1, S_T2, S_T3 = 35, 36, 37, 38
S_PX, S_PW2, S_PW3, S_PW4, S_PWO, S_POUT = 40, 42, 44, 46, 48, 50
S_C1 = 52
S_N, S_T0F = 54, 55
S_LW = 56
S_WCUR, S_ACUR = 57, 58
S_EX = 60

V_L16, V_L31, V_H = 1, 2, 3
V_T = 232
VGPRS = 256


def prologue(k):
    k.I(f"""
    s_load_dwordx2 {s(S_WS, 2)}, s[0:1], {KA_WS}
    s_load_dwordx2 {s(S_PX, 2)}, s[0:1], {KA_X}
    s_load_dwordx4 {s(S_PW2 + 2, 4)}, s[0:1], {KA_W3}
    s_load_dwordx2 {s(S_PW2, 2)}, s[0:1], {KA_W2}
    s_load_dwordx2 {s(S_PWO, 2)}, s[0:1], {KA_WO}
    s_load_dwordx2 {s(S_POUT, 2)}, s[0:1], {KA_OUT}
    v_lshrrev_b32 v1, 6, v0
    v_and_b32 v0, 63, v0
    s_and_b32 {s(S_T0)}, s2, 7
    v_readfirstlane_b32 {s(S_WAVE)}, v1
    s_lshl_b32 {s(S_T0)}, {s(S_T0)}, 2
    s_bfe_u32 {s(S_T1)}, s2, 0x20006
    s_add_u32 {s(S_G)}, {s(S_T0)}, {s(S_T1)}
    s_bfe_u32 {s(S_C)}, s2, 0x30003
    v_lshlrev_b32 {v(V_L16)}, 4, v0
    v_and_b32 {v(V_L31)}, 31, v0
    v_lshrrev_b32 {v(V_H)}, 5, v0
    s_lshr_b32 {s(S_RT)}, {s(S_WAVE)}, 1
    s_and_b32 {s(S_KH)}, {s(S_WAVE)}, 1
    s_waitcnt lgkmcnt(0)
    """)


V_F = 8
V_AW = 4
V_FW = 72
V_ACC = 88
V_VW = 6
V_RED = 7
V_E = 120
L_RED = 65536


def s64_weights(k, wptr):
    srd(k, S_W, wptr, 512 * 512 * 2)
    T = V_T
    k.I(f"""
    v_lshrrev_b32 {v(T)}, 3, v0
    v_lshlrev_b32 {v(V_VW)}, 10, {v(T)}
    v_bfe_u32 {v(T)}, v0, 4, 1
    v_lshlrev_b32 {v(T)}, 2, {v(T)}
    v_and_b32 {v(T + 1)}, 7, v0
    v_xor_b32 {v(T)}, {v(T)}, {v(T + 1)}
    v_lshl_add_u32 {v(V_VW)}, {v(T)}, 4, {v(V_VW)}
    s_lshl_b32 {s(S_T0)}, {s(S_WAVE)}, 13
    s_lshl_b32 {s(S_T1)}, {s(S_C)}, 7
    s_add_u32 {s(S_WCUR)}, {s(S_T0)}, {s(S_T1)}
    s_lshl_b32 {s(S_LW)}, {s(S_WAVE)}, 10
    """)
    for m in range(16):
        k.I(f"""
        s_add_u32 m0, {s(S_LW)}, {m * 4096}
        s_add_u32 {s(S_T0)}, {s(S_WCUR)}, {m * 32768}
        buffer_load_dwordx4 {v(V_VW)}, {s(S_W, 4)}, {s(S_T0)} offen lds
        """)


def s64_acts(k, region, mods=""):
    srd(k, S_A, S_WS, 2 << 20, region)
    k.I(f"""
    s_lshl_b32 {s(S_T0)}, {s(S_G)}, 1
    s_add_u32 {s(S_T0)}, {s(S_T0)}, {s(S_RT)}
    s_lshl_b32 {s(S_T0)}, {s(S_T0)}, 5
    s_lshl_b32 {s(S_T1)}, {s(S_KH)}, 4
    s_add_u32 {s(S_T0)}, {s(S_T0)}, {s(S_T1)}
    s_lshl_b32 {s(S_ACUR)}, {s(S_T0)}, 10
    """)
    for i in range(16):
        if i and i % 4 == 0:
            k.I(f"s_add_u32 {s(S_ACUR)}, {s(S_ACUR)}, 4096")
        k.I(f"buffer_load_dwordx4 {v(V_F + 4 * i, 4)}, {v(V_L16)}, {s(S_A, 4)}, {s(S_ACUR)} offen offset:{(i % 4) * 1024} {mods}")


def s64_addr(k):
    T = V_T
    k.I(f"""
    v_bfe_u32 {v(T)}, v0, 2, 2
    v_lshl_add_u32 {v(T + 1)}, {v(V_H)}, 2, {v(T)}
    v_lshlrev_b32 {v(T + 1)}, 7, {v(T + 1)}
    v_bfe_u32 {v(T + 2)}, v0, 4, 1
    v_lshl_add_u32 {v(T + 1)}, {v(T + 2)}, 5, {v(T + 1)}
    v_and_b32 {v(T + 2)}, 3, v0
    v_lshl_add_u32 {v(T + 1)}, {v(T + 2)}, 3, {v(T + 1)}
    s_lshl_b32 {s(S_T0)}, {s(S_KH)}, 15
    v_add_u32 {v(T + 1)}, {s(S_T0)}, {v(T + 1)}
    v_lshrrev_b32 {v(T)}, 1, {v(T)}
    v_lshl_add_u32 {v(V_AW)}, {v(T)}, 6, {v(T + 1)}
    v_xor_b32 {v(T)}, 1, {v(T)}
    v_lshl_add_u32 {v(V_AW + 1)}, {v(T)}, 6, {v(T + 1)}
    s_lshl_b32 {s(S_T0)}, {s(S_WAVE)}, 12
    s_add_u32 {s(S_T0)}, {s(S_T0)}, {L_RED}
    v_add_u32 {v(V_RED)}, {s(S_T0)}, {v(V_L16)}
    """)


def s64_main(k, act_wait):
    def reads(sx):
        b = sx & 1
        for ct in range(2):
            k.I(f"ds_read_b64_tr_b16 {v(V_FW + 8 * b + 4 * ct, 2)}, {v(V_AW + ct)} offset:{sx * 2048}")
            k.I(f"ds_read_b64_tr_b16 {v(V_FW + 8 * b + 4 * ct + 2, 2)}, {v(V_AW + ct)} offset:{sx * 2048 + 1024}")

    reads(0)
    for sx in range(16):
        b = sx & 1
        act_wait(sx)
        k.I("s_waitcnt lgkmcnt(0)")
        for ct in range(2):
            c = "0" if sx == 0 else v(V_ACC + 16 * ct, 16)
            k.I(f"v_mfma_f32_32x32x16_bf16 {v(V_ACC + 16 * ct, 16)}, {v(V_FW + 8 * b + 4 * ct, 4)}, {v(V_F + 4 * sx, 4)}, {c}")
            if ct == 0 and sx + 1 < 16:
                reads(sx + 1)
    k.nop(12)
    lab = k.uid("B_RED")
    k.I(f"""
    s_cmp_eq_u32 {s(S_KH)}, 0
    s_cbranch_scc1 {lab}
    """)
    for i in range(16):
        k.I(f"v_swap_b32 {v(V_ACC + i)}, {v(V_ACC + 16 + i)}")
    k.L(lab)
    for q in range(4):
        k.I(f"ds_write_b128 {v(V_RED)}, {v(V_ACC + 16 + 4 * q, 4)} offset:{q * 1024}")
    k.I(f"""
    s_waitcnt lgkmcnt(0)
    s_barrier
    v_xor_b32 {v(V_RED)}, 0x1000, {v(V_RED)}
    """)
    for q in range(4):
        k.I(f"ds_read_b128 {v(V_ACC + 16 + 4 * q, 4)}, {v(V_RED)} offset:{q * 1024}")
    k.I("s_waitcnt lgkmcnt(0)")
    for i in range(8):
        k.I(f"v_pk_add_f32 {v(V_ACC + 2 * i, 2)}, {v(V_ACC + 2 * i, 2)}, {v(V_ACC + 16 + 2 * i, 2)}")


def unpack8(k, dst, src):
    for i in range(4):
        k.I(f"v_lshlrev_b32 {v(dst + 2 * i)}, 16, {v(src + i)}")
        k.I(f"v_and_b32 {v(dst + 2 * i + 1)}, 0xffff0000, {v(src + i)}")


def stage_w2(k, pre_signal=None):
    mods = common.B_STORE_MODS
    V_X = V_E
    V_XO = V_E + 8
    s64_weights(k, S_PW2)
    s64_acts(k, HSF)
    srd(k, S_X, S_PX, 2048 * 512 * 2)
    k.I(f"""
    s_lshl_b32 {s(S_T0)}, {s(S_G)}, 1
    s_add_u32 {s(S_T0)}, {s(S_T0)}, {s(S_RT)}
    s_lshl_b32 {s(S_T0)}, {s(S_T0)}, 15
    s_lshl_b32 {s(S_T1)}, {s(S_C)}, 7
    s_add_u32 {s(S_T0)}, {s(S_T0)}, {s(S_T1)}
    s_lshl_b32 {s(S_T1)}, {s(S_KH)}, 6
    s_add_u32 {s(S_T0)}, {s(S_T0)}, {s(S_T1)}
    v_lshlrev_b32 {v(V_XO)}, 10, {v(V_L31)}
    v_lshl_add_u32 {v(V_XO)}, {v(V_H)}, 3, {v(V_XO)}
    """)
    for i in range(4):
        k.I(f"buffer_load_dwordx2 {v(V_X + 2 * i, 2)}, {v(V_XO)}, {s(S_X, 4)}, {s(S_T0)} offen offset:{i * 16}")
    s64_addr(k)
    k.I("s_waitcnt vmcnt(20)")
    k.I("s_barrier")
    s64_main(k, lambda i: k.I(f"s_waitcnt vmcnt({4 + 15 - i})"))
    k.I("s_waitcnt vmcnt(0)")
    X = V_F
    for hf in range(2):
        unpack8(k, X + 8 * hf, V_X + 4 * hf)
    for i in range(8):
        k.I(f"v_pk_add_f32 {v(V_ACC + 2 * i, 2)}, {v(V_ACC + 2 * i, 2)}, {v(X + 2 * i, 2)}")
    SX, SQ = V_T, V_T + 1
    k.I(f"v_add_f32 {v(SX)}, {v(V_ACC)}, {v(V_ACC + 1)}")
    k.I(f"v_mul_f32 {v(SQ)}, {v(V_ACC)}, {v(V_ACC)}")
    k.I(f"v_fmac_f32 {v(SQ)}, {v(V_ACC + 1)}, {v(V_ACC + 1)}")
    for i in range(2, 16):
        k.I(f"v_add_f32 {v(SX)}, {v(SX)}, {v(V_ACC + i)}")
        k.I(f"v_fmac_f32 {v(SQ)}, {v(V_ACC + i)}, {v(V_ACC + i)}")
    sum_halves(k, SX, V_T + 2)
    sum_halves(k, SQ, V_T + 2)
    srd(k, S_O, S_WS, 2 << 20, X1F)
    srd(k, S_U, S_WS, 2048 * 128, STOFF)
    k.I(f"""
    s_lshl_b32 {s(S_T0)}, {s(S_G)}, 1
    s_add_u32 {s(S_T0)}, {s(S_T0)}, {s(S_RT)}
    s_lshl_b32 {s(S_T2)}, {s(S_T0)}, 12
    s_lshl_b32 {s(S_T0)}, {s(S_T0)}, 5
    s_lshl_b32 {s(S_T1)}, {s(S_C)}, 2
    s_add_u32 {s(S_T0)}, {s(S_T0)}, {s(S_T1)}
    s_lshl_b32 {s(S_T1)}, {s(S_KH)}, 1
    s_add_u32 {s(S_T0)}, {s(S_T0)}, {s(S_T1)}
    s_lshl_b32 {s(S_T0)}, {s(S_T0)}, 10
    s_lshl_b32 {s(S_T1)}, {s(S_C)}, 4
    s_add_u32 {s(S_T2)}, {s(S_T2)}, {s(S_T1)}
    s_lshl_b32 {s(S_T1)}, {s(S_KH)}, 3
    s_add_u32 {s(S_T2)}, {s(S_T2)}, {s(S_T1)}
    v_lshlrev_b32 {v(V_T + 3)}, 7, {v(V_L31)}
    """)
    for hf in range(2):
        for i in range(4):
            k.I(f"v_cvt_pk_bf16_f32 {v(X + 4 * hf + i)}, {v(V_ACC + 8 * hf + 2 * i)}, {v(V_ACC + 8 * hf + 2 * i + 1)}")
        k.I(f"buffer_store_dwordx4 {v(X + 4 * hf, 4)}, {v(V_L16)}, {s(S_O, 4)}, {s(S_T0)} offen offset:{hf * 1024} {mods}")
    k.I(f"""
    s_mov_b32 exec_hi, 0
    buffer_store_dwordx2 {v(SX, 2)}, {v(V_T + 3)}, {s(S_U, 4)}, {s(S_T2)} offen {mods}
    s_mov_b64 exec, -1
    """)


def stage_o(k, mid_wait=None, act_mods="", part_mods=""):
    V_PT = V_E
    V_X1 = V_E + 64
    V_G = V_E + 72
    V_OO = V_E + 73
    srd(k, S_X, S_WS, 16 << 20, PART)
    srd(k, S_U, S_WS, 2 << 20, X1F)
    k.I(f"""
    s_lshl_b32 {s(S_T0)}, {s(S_G)}, 1
    s_add_u32 {s(S_T0)}, {s(S_T0)}, {s(S_RT)}
    s_lshl_b32 {s(S_T3)}, {s(S_T0)}, 5
    s_lshl_b32 {s(S_T0)}, {s(S_T0)}, 5
    s_lshl_b32 {s(S_T1)}, {s(S_C)}, 2
    s_add_u32 {s(S_T0)}, {s(S_T0)}, {s(S_T1)}
    s_lshl_b32 {s(S_T1)}, {s(S_KH)}, 1
    s_add_u32 {s(S_T0)}, {s(S_T0)}, {s(S_T1)}
    s_lshl_b32 {s(S_T0)}, {s(S_T0)}, 10
    """)
    for cp in range(8):
        for hf in range(2):
            k.I(f"buffer_load_dwordx4 {v(V_PT + 8 * cp + 4 * hf, 4)}, {v(V_L16)}, {s(S_X, 4)}, {s(S_T0)} offen offset:{hf * 1024} {part_mods}")
        if cp == 0:
            for hf in range(2):
                k.I(f"buffer_load_dwordx4 {v(V_X1 + 4 * hf, 4)}, {v(V_L16)}, {s(S_U, 4)}, {s(S_T0)} offen offset:{hf * 1024} {part_mods}")
        if cp < 7:
            k.I(f"s_add_u32 {s(S_T0)}, {s(S_T0)}, {2 << 20}")
    srd(k, S_U, S_WS, 8192, GOFF)
    k.I(f"""
    v_add_u32 {v(V_OO)}, {s(S_T3)}, {v(V_L31)}
    v_lshlrev_b32 {v(V_G)}, 2, {v(V_OO)}
    buffer_load_dword {v(V_G)}, {v(V_G)}, {s(S_U, 4)}, 0 offen
    """)
    s64_addr(k)
    if mid_wait:
        mid_wait(k)
    s64_acts(k, OF, act_mods)
    k.I("s_waitcnt vmcnt(16)")
    k.I("s_barrier")
    B = V_T
    TMP = V_E + 76
    for hf in range(2):
        unpack8(k, B + 8 * hf, V_X1 + 4 * hf)
        for cp in range(8):
            unpack8(k, TMP, V_PT + 8 * cp + 4 * hf)
            for i in range(4):
                k.I(f"v_pk_add_f32 {v(B + 8 * hf + 2 * i, 2)}, {v(B + 8 * hf + 2 * i, 2)}, {v(TMP + 2 * i, 2)}")
    for i in range(16):
        k.I(f"v_mov_b32 {v(V_PT + i)}, {v(B + i)}")
    B = V_PT
    s64_main(k, lambda i: k.I(f"s_waitcnt vmcnt({15 - i})"))
    for i in range(8):
        k.I(f"v_pk_add_f32 {v(V_ACC + 2 * i, 2)}, {v(V_ACC + 2 * i, 2)}, {v(B + 2 * i, 2)} neg_lo:[0,1] neg_hi:[0,1]")
    for i in range(8):
        k.I(f"v_pk_fma_f32 {v(V_ACC + 2 * i, 2)}, {v(V_ACC + 2 * i, 2)}, {v(V_G, 2)}, {v(B + 2 * i, 2)} op_sel_hi:[1,0,1]")
    srd(k, S_O, S_POUT, 2048 * 512 * 2)
    k.I(f"""
    v_lshlrev_b32 {v(V_OO)}, 10, {v(V_OO)}
    v_lshl_add_u32 {v(V_OO)}, {v(V_H)}, 4, {v(V_OO)}
    s_lshl_b32 {s(S_T0)}, {s(S_C)}, 7
    s_lshl_b32 {s(S_T1)}, {s(S_KH)}, 6
    s_add_u32 {s(S_T0)}, {s(S_T0)}, {s(S_T1)}
    """)
    X = V_F
    for hf in range(2):
        for i in range(4):
            k.I(f"v_cvt_pk_bf16_f32 {v(X + 4 * hf + i)}, {v(V_ACC + 8 * hf + 2 * i)}, {v(V_ACC + 8 * hf + 2 * i + 1)}")
    k.nop(2)
    for hf in range(2):
        k.I(f"v_permlane32_swap_b32 {v(X + 4 * hf)}, {v(X + 4 * hf + 2)}")
        k.I(f"v_permlane32_swap_b32 {v(X + 4 * hf + 1)}, {v(X + 4 * hf + 3)}")
    for hf in range(2):
        k.I(f"buffer_store_dwordx4 {v(X + 4 * hf, 4)}, {v(V_OO)}, {s(S_O, 4)}, {s(S_T0)} offen offset:{hf * 32}")


F_SLOT = 16384
L_HID = 0
R2, R3, R1 = 24576, 40960, 65536
W4_SLOT = [R1, R2, R3]
V3_ACC = 8
V3_FA = 56
V3_FW = 72
V3_AA = 88
V3_AW = 90
V3_VW = 92
V3_HA = 93
V3_CS = 96
V3_ST = 128
V3_MU = 160
V3_C0 = 164
V3_G = 168
V4_ACC = 8
V4_FH = 136
V4_FW = 152
V4_AH = 192
V4_AW = 193
V4_VW = 197
V4_T = 200
S_W3O = (62, 63, 64)
S_W4B = 65


def stage_f(k, pre_wait=None, act_mods=""):
    T = V_T
    mods = common.B_STORE_MODS
    k.I(f"""
    s_mul_i32 {s(S_T0F)}, {s(S_C)}, 6
    s_mul_i32 {s(S_T0)}, {s(S_C)}, 5
    s_add_u32 {s(S_T0)}, {s(S_T0)}, 3
    s_cmp_lt_u32 {s(S_C)}, 3
    s_cselect_b32 {s(S_T0F)}, {s(S_T0F)}, {s(S_T0)}
    s_cselect_b32 {s(S_N)}, 6, 5
    """)
    srd(k, S_W, S_PW3, 512 * 1376 * 2)
    srd(k, S_A, S_WS, 2 << 20, X1F)
    k.I(f"""
    v_lshrrev_b32 {v(T)}, 2, v0
    s_lshl_b32 {s(S_T0)}, {s(S_KH)}, 4
    v_add_u32 {v(T)}, {s(S_T0)}, {v(T)}
    s_mov_b32 {s(S_T1)}, 2752
    v_mul_lo_u32 {v(V3_VW)}, {v(T)}, {s(S_T1)}
    v_and_b32 {v(T)}, 3, v0
    v_lshl_add_u32 {v(V3_VW)}, {v(T)}, 4, {v(V3_VW)}
    s_add_u32 {s(S_T0)}, {s(S_RT)}, {s(S_T0F)}
    s_lshl_b32 {s(S_W3O[0])}, {s(S_T0)}, 6
    s_add_u32 {s(S_W3O[1])}, {s(S_W3O[0])}, 128
    s_add_u32 {s(S_W3O[2])}, {s(S_W3O[0])}, 256
    s_add_u32 {s(S_T0)}, {s(S_T0F)}, {s(S_N)}
    s_sub_u32 {s(S_T0)}, {s(S_T0)}, 1
    s_lshl_b32 {s(S_T0)}, {s(S_T0)}, 6
    s_min_u32 {s(S_W3O[2])}, {s(S_W3O[2])}, {s(S_T0)}
    s_lshl_b32 {s(S_T0)}, {s(S_G)}, 1
    s_add_u32 {s(S_T0)}, {s(S_T0)}, {s(S_RT)}
    s_lshl_b32 {s(S_T0)}, {s(S_T0)}, 5
    s_add_u32 {s(S_T0)}, {s(S_T0)}, {s(S_KH)}
    s_lshl_b32 {s(S_ACUR)}, {s(S_T0)}, 10
    s_lshl_b32 {s(S_LW)}, {s(S_WAVE)}, 10
    """)

    def wload(st):
        slot = (st % 4) * F_SLOT
        for m in range(3):
            k.I(f"""
            s_add_u32 m0, {s(S_LW)}, {slot + 4096 + m * 4096}
            s_add_u32 {s(S_T0)}, {s(S_W3O[m])}, {st * 32 * 2752}
            buffer_load_dwordx4 {v(V3_VW)}, {s(S_W, 4)}, {s(S_T0)} offen lds
            """)

    def aload(st):
        slot = (st % 4) * F_SLOT
        k.I(f"""
        s_add_u32 m0, {s(S_LW)}, {slot}
        s_add_u32 {s(S_T0)}, {s(S_ACUR)}, {st * 2048}
        buffer_load_dwordx4 {v(V_L16)}, {s(S_A, 4)}, {s(S_T0)} offen {act_mods} lds
        """)

    for st in range(4):
        wload(st)
    srd(k, S_U, S_WS, 1376 * 4, CS3)
    k.I(f"""
    s_add_u32 {s(S_T0)}, {s(S_T0F)}, {s(S_WAVE)}
    s_lshl_b32 {s(S_T0)}, {s(S_T0)}, 7
    s_add_u32 {s(S_T1)}, {s(S_RT)}, {s(S_T0F)}
    s_add_u32 {s(S_T1)}, {s(S_T1)}, 4
    s_lshl_b32 {s(S_T1)}, {s(S_T1)}, 7
    v_lshlrev_b32 {v(T)}, 4, {v(V_H)}
    """)
    for q in range(4):
        k.I(f"buffer_load_dwordx4 {v(V3_CS + 4 * q, 4)}, {v(T)}, {s(S_U, 4)}, {s(S_T0)} offen offset:{q * 32}")
    for q in range(4):
        k.I(f"buffer_load_dwordx4 {v(V3_CS + 16 + 4 * q, 4)}, {v(T)}, {s(S_U, 4)}, {s(S_T1)} offen offset:{q * 32}")
    k.I(f"""
    s_lshl_b32 {s(S_T0)}, {s(S_KH)}, 11
    v_add_u32 {v(V3_AA)}, {s(S_T0)}, {v(V_L16)}
    v_xor_b32 {v(V3_AA + 1)}, 0x800, {v(V3_AA)}
    v_bfe_u32 {v(T + 1)}, v0, 2, 2
    v_lshl_add_u32 {v(T + 1)}, {v(V_H)}, 2, {v(T + 1)}
    v_lshlrev_b32 {v(T + 1)}, 6, {v(T + 1)}
    v_bfe_u32 {v(T + 2)}, v0, 4, 1
    v_lshl_add_u32 {v(T + 1)}, {v(T + 2)}, 5, {v(T + 1)}
    v_and_b32 {v(T + 2)}, 3, v0
    v_lshl_add_u32 {v(T + 1)}, {v(T + 2)}, 3, {v(T + 1)}
    s_lshl_b32 {s(S_T0)}, {s(S_WAVE)}, 11
    s_add_u32 {s(S_T0)}, {s(S_T0)}, 4096
    v_add_u32 {v(V3_AW)}, {s(S_T0)}, {v(T + 1)}
    s_add_u32 {s(S_T0)}, {s(S_RT)}, 4
    s_lshl_b32 {s(S_T0)}, {s(S_T0)}, 11
    s_add_u32 {s(S_T0)}, {s(S_T0)}, 4096
    v_add_u32 {v(V3_AW + 1)}, {s(S_T0)}, {v(T + 1)}
    """)
    srd(k, S_O, S_PW4, 1376 * 512 * 2)
    k.I(f"""
    v_lshrrev_b32 {v(T)}, 4, v0
    v_lshlrev_b32 {v(V4_VW)}, 10, {v(T)}
    v_lshlrev_b32 {v(T)}, 2, {v(T)}
    v_and_b32 {v(T + 1)}, 15, v0
    v_xor_b32 {v(T)}, {v(T)}, {v(T + 1)}
    v_lshl_add_u32 {v(V4_VW)}, {v(T)}, 4, {v(V4_VW)}
    s_lshl_b32 {s(S_W4B)}, {s(S_T0F)}, 15
    s_lshl_b32 {s(S_T0)}, {s(S_WAVE)}, 8
    s_add_u32 {s(S_W4B)}, {s(S_W4B)}, {s(S_T0)}
    s_lshl_b32 {s(S_T3)}, {s(S_WAVE)}, 12
    """)

    def w4load(j):
        for m in range(4):
            k.I(f"""
            s_add_u32 m0, {s(S_T3)}, {W4_SLOT[j % 3] + m * 1024}
            s_add_u32 {s(S_T0)}, {s(S_W4B)}, {(16 * j + 4 * m) * 1024}
            buffer_load_dwordx4 {v(V4_VW)}, {s(S_O, 4)}, {s(S_T0)} offen lds
            """)

    if pre_wait:
        pre_wait(k)
    for st in range(4):
        aload(st)
    srd(k, S_X, S_WS, 2048 * 128, STOFF)
    k.I(f"""
    s_lshl_b32 {s(S_T0)}, {s(S_G)}, 13
    s_lshl_b32 {s(S_T1)}, {s(S_KH)}, 12
    s_add_u32 {s(S_T1)}, {s(S_T1)}, {s(S_T0)}
    s_xor_b32 {s(S_T2)}, {s(S_T1)}, 0x1000
    v_lshlrev_b32 {v(T)}, 7, {v(V_L31)}
    v_lshl_add_u32 {v(T)}, {v(V_H)}, 6, {v(T)}
    """)
    for rr, so in ((0, S_T1), (1, S_T2)):
        for q in range(4):
            k.I(f"buffer_load_dwordx4 {v(V3_ST + 16 * rr + 4 * q, 4)}, {v(T)}, {s(S_X, 4)}, {s(so)} offen offset:{q * 16} {act_mods}")

    def reads(j):
        st, sx = j >> 1, j & 1
        slot = (st % 4) * F_SLOT
        b = j & 1
        g1 = [f"ds_read_b64_tr_b16 {v(V3_FW + 8 * b, 2)}, {v(V3_AW)} offset:{slot + sx * 1024}",
              f"ds_read_b64_tr_b16 {v(V3_FW + 8 * b + 2, 2)}, {v(V3_AW)} offset:{slot + sx * 1024 + 512}",
              f"ds_read_b128 {v(V3_FA + 8 * b, 4)}, {v(V3_AA)} offset:{slot + sx * 1024}"]
        g2 = [f"ds_read_b128 {v(V3_FA + 8 * b + 4, 4)}, {v(V3_AA + 1)} offset:{slot + sx * 1024}",
              f"ds_read_b64_tr_b16 {v(V3_FW + 8 * b + 4, 2)}, {v(V3_AW + 1)} offset:{slot + sx * 1024}",
              f"ds_read_b64_tr_b16 {v(V3_FW + 8 * b + 6, 2)}, {v(V3_AW + 1)} offset:{slot + sx * 1024 + 512}"]
        return g1, g2

    def wait_for(st):
        if st < 4:
            later = (3 - st) + 8 + 4 * max(0, st - 1)
            return later
        return 4 * (min(15, st + 2) - st) + (4 if st >= 14 else 0)

    k.I(f"s_waitcnt vmcnt({wait_for(0)})")
    k.I("s_barrier")
    g1, g2 = reads(0)
    for t in g1 + g2:
        k.I(t)
    for j in range(32):
        st, sx = j >> 1, j & 1
        b = j & 1

        def mf(i, fw, fa):
            c = "0" if j == 0 else v(V3_ACC + 16 * i, 16)
            k.I(f"v_mfma_f32_32x32x16_bf16 {v(V3_ACC + 16 * i, 16)}, {v(fw, 4)}, {v(fa, 4)}, {c}")

        k.I("s_waitcnt lgkmcnt(0)")
        mf(0, V3_FW + 8 * b, V3_FA + 8 * b)
        if sx == 1 and st < 15:
            k.I(f"s_waitcnt vmcnt({wait_for(st + 1)})")
            k.I("s_barrier")
        if j + 1 < 32:
            g1, g2 = reads(j + 1)
            for t in g1:
                k.I(t)
        mf(1, V3_FW + 8 * b, V3_FA + 8 * b + 4)
        if j + 1 < 32:
            for t in g2:
                k.I(t)
        mf(2, V3_FW + 8 * b + 4, V3_FA + 8 * b)
        if sx == 1 and st + 4 <= 15:
            wload(st + 4)
            aload(st + 4)
        if sx == 1 and st == 12:
            w4load(0)
    w4load(1)
    for rr in range(2):
        B = V3_ST + 16 * rr
        for i in range(1, 8):
            k.I(f"v_pk_add_f32 {v(B, 2)}, {v(B, 2)}, {v(B + 2 * i, 2)}") if False else None
    k.I("s_waitcnt vmcnt(8)")
    for rr in range(2):
        B = V3_ST + 16 * rr
        for i in range(1, 8):
            k.I(f"v_pk_add_f32 {v(B, 2)}, {v(B, 2)}, {v(B + 2 * i, 2)}")
        sum_halves(k, B, T)
        sum_halves(k, B + 1, T)
        mu = V3_MU + 2 * rr
        k.I(f"""
        v_mul_f32 {v(mu)}, {hx(f2u(1.0 / 512))}, {v(B)}
        v_mul_f32 {v(mu + 1)}, {hx(f2u(1.0 / 512))}, {v(B + 1)}
        v_fma_f32 {v(mu + 1)}, -{v(mu)}, {v(mu)}, {v(mu + 1)}
        v_max_f32 {v(mu + 1)}, 0, {v(mu + 1)}
        v_add_f32 {v(mu + 1)}, {hx(f2u(1e-5))}, {v(mu + 1)}
        v_rsq_f32 {v(mu + 1)}, {v(mu + 1)}
        """)
    k.I(f"""
    s_mul_i32 {s(S_T0)}, {s(S_KH)}, 12288
    s_lshl_b32 {s(S_T1)}, {s(S_WAVE)}, 11
    s_add_u32 {s(S_T1)}, {s(S_T1)}, {s(S_T0)}
    v_add_u32 {v(V3_HA)}, {s(S_T1)}, {v(V_L16)}
    s_sub_u32 {s(S_T2)}, 12288, {s(S_T0)}
    s_lshl_b32 {s(S_T1)}, {s(S_WAVE)}, 11
    s_add_u32 {s(S_T1)}, {s(S_T1)}, {s(S_T2)}
    v_add_u32 {v(V3_HA + 1)}, {s(S_T1)}, {v(V_L16)}
    s_add_u32 {s(S_T1)}, {s(S_RT)}, 4
    s_lshl_b32 {s(S_T1)}, {s(S_T1)}, 11
    s_add_u32 {s(S_T1)}, {s(S_T1)}, {s(S_T0)}
    v_add_u32 {v(V3_HA + 2)}, {s(S_T1)}, {v(V_L16)}
    v_mov_b32 {v(V3_C0)}, {hx(f2u(GELU_C0))}
    v_mov_b32 {v(V3_C0 + 1)}, {hx(f2u(GELU_C0))}
    s_mov_b32 {s(S_C1)}, {hx(f2u(GELU_C1))}
    s_mov_b32 {s(S_C1 + 1)}, {hx(f2u(GELU_C1))}
    """)
    for i, (mu, cs) in enumerate(((V3_MU, V3_CS), (V3_MU + 2, V3_CS), (V3_MU, V3_CS + 16))):
        A = V3_ACC + 16 * i
        for q in range(8):
            k.I(f"v_pk_fma_f32 {v(A + 2 * q, 2)}, {v(mu, 2)}, {v(cs + 2 * q, 2)}, {v(A + 2 * q, 2)} op_sel_hi:[0,1,1] neg_lo:[1,0,0] neg_hi:[1,0,0]")
        for q in range(8):
            k.I(f"v_pk_mul_f32 {v(A + 2 * q, 2)}, {v(A + 2 * q, 2)}, {v(mu, 2)} op_sel:[0,1] op_sel_hi:[1,1]")
        gelu_pairs(k, [A + 2 * q for q in range(8)], V3_G, V3_C0, S_C1)
        for hf in range(2):
            P = V3_G + 16 + 4 * hf
            for q in range(4):
                k.I(f"v_cvt_pk_bf16_f32 {v(P + q)}, {v(A + 8 * hf + 2 * q)}, {v(A + 8 * hf + 2 * q + 1)}")
            k.I(f"ds_write_b128 {v(V3_HA + i)}, {v(P, 4)} offset:{L_HID + hf * 1024}")
    k.I(f"""
    v_bfe_u32 {v(T)}, v0, 2, 2
    v_lshl_add_u32 {v(T + 1)}, {v(V_H)}, 2, {v(T)}
    v_lshlrev_b32 {v(T + 1)}, 8, {v(T + 1)}
    v_bfe_u32 {v(T + 2)}, v0, 4, 1
    v_lshl_add_u32 {v(T + 1)}, {v(T + 2)}, 5, {v(T + 1)}
    v_and_b32 {v(T + 2)}, 3, v0
    v_lshl_add_u32 {v(T + 1)}, {v(T + 2)}, 3, {v(T + 1)}
    s_add_u32 {s(S_T0)}, {s(S_T3)}, {R2}
    v_add_u32 {v(T + 1)}, {s(S_T0)}, {v(T + 1)}
    """)
    for ct in range(4):
        k.I(f"v_xor_b32 {v(T + 2)}, {ct}, {v(T)}")
        k.I(f"v_lshl_add_u32 {v(V4_AW + ct)}, {v(T + 2)}, 6, {v(T + 1)}")
    k.I(f"""
    v_mov_b32 {v(V4_AH)}, {v(V_L16)}
    s_waitcnt lgkmcnt(0)
    s_barrier
    """)
    w4load(2)

    def reads4(j):
        b = j & 1
        so = W4_SLOT[j % 3] - R2
        g = [[], []]
        for ct in range(4):
            for jr in range(2):
                g[ct >> 1].append(f"ds_read_b64_tr_b16 {v(V4_FW + 16 * b + 4 * ct + 2 * jr, 2)}, {v(V4_AW + ct)} offset:{so + jr * 2048}")
        h = [f"ds_read_b128 {v(V4_FH + 8 * b + 4 * rt, 4)}, {v(V4_AH)} offset:{L_HID + rt * 12288 + j * 1024}" for rt in range(2)]
        return h[0:1] + g[0][:2], h[1:2] + g[0][2:], g[1][:2], g[1][2:]

    k.I("s_waitcnt vmcnt(8)")
    for grp in reads4(0):
        for t in grp:
            k.I(t)
    lab_done = k.uid("B_W4DONE")
    for j in range(12):
        b = j & 1
        k.I("s_waitcnt lgkmcnt(0)")
        if j == 10:
            k.I(f"s_cmp_eq_u32 {s(S_N)}, 5")
            k.I(f"s_cbranch_scc1 {lab_done}")
        if j + 3 < 12:
            w4load(j + 3)
        grps = reads4(j + 1) if j + 1 < 12 else [[], [], [], []]
        n = 0
        for ct in range(4):
            for rt in range(2):
                A = V4_ACC + 32 * ct + 16 * rt
                c = "0" if j == 0 else v(A, 16)
                k.I(f"v_mfma_f32_32x32x16_bf16 {v(A, 16)}, {v(V4_FW + 16 * b + 4 * ct, 4)}, {v(V4_FH + 8 * b + 4 * rt, 4)}, {c}")
                if n == 0 and j + 1 < 12:
                    issued = min(12, j + 4)
                    k.I(f"s_waitcnt vmcnt({4 * (issued - (j + 2))})")
                if n < 4:
                    for t in grps[n]:
                        k.I(t)
                n += 1
    k.L(lab_done)
    k.I("s_waitcnt lgkmcnt(0)")
    srd(k, S_A, S_WS, 16 << 20, PART)
    k.I(f"""
    s_lshl_b32 {s(S_T0)}, {s(S_C)}, 21
    s_lshl_b32 {s(S_T1)}, {s(S_G)}, 16
    s_add_u32 {s(S_T0)}, {s(S_T0)}, {s(S_T1)}
    s_lshl_b32 {s(S_T1)}, {s(S_WAVE)}, 13
    s_add_u32 {s(S_T0)}, {s(S_T0)}, {s(S_T1)}
    """)
    k.nop(8)
    n = 0
    for ct in range(4):
        for rt in range(2):
            for hf in range(2):
                A = V4_ACC + 32 * ct + 16 * rt + 8 * hf
                P = V4_T + 4 * (n & 3)
                for q in range(4):
                    k.I(f"v_cvt_pk_bf16_f32 {v(P + q)}, {v(A + 2 * q)}, {v(A + 2 * q + 1)}")
                k.I(f"s_add_u32 {s(S_T1)}, {s(S_T0)}, {rt * 32768 + (2 * ct + hf) * 1024}")
                k.I(f"buffer_store_dwordx4 {v(P, 4)}, {v(V_L16)}, {s(S_A, 4)}, {s(S_T1)} offen {mods}")
                n += 1


def gen_stage(name, which):
    k = Asm()
    kernel_header(k, name)
    end = name.upper() + "_END"
    k.I(f"""
    s_cmp_ge_u32 s2, 256
    s_cbranch_scc1 {end}
    """)
    prologue(k)
    if which == "w2":
        stage_w2(k)
    elif which == "f":
        stage_f(k)
    else:
        s64_weights(k, S_PWO)
        stage_o(k)
    k.L(end)
    k.I("s_endpgm")
    return k
```

```python
import sys
sys.path.insert(0, "gen")
from build import build
import common
if '--prof' in sys.argv:
    common.PROF_ON = True
    sys.argv.remove('--prof')
import k1, attn, roleb
common.K1_STORE_MODS = "sc1 nt"
K = []
K.append(dict(name=k1.NAME, asm=k1.gen(), grid=256, block=512, lds=k1.LDS_BYTES, vgpr=k1.VGPRS,
   takes=[{}, {"K1_DEC_H": True, "K1_EPI_H": True}, {"K1_EPI_K": True}, {"K1_VTYPE": True}, {"K1_LOADER": True}, {"K1_LOADER": True, "K1_NOCS_A": True, "K1_NOCS_B": True}, {"K1_LOADER": True, "K1_LOADER_H": True}]))
K.append(dict(name=attn.NAME, asm=attn.gen(), grid=256, block=attn.BLOCK, lds=attn.LDS_BYTES, vgpr=attn.VGPRS, takes=attn.TAKES))
for n, w in (("kw2_kernel", "w2"), ("kf_kernel", "f"), ("ko_kernel", "o")):
    K.append(dict(name=n, asm=roleb.gen_stage(n, w), grid=256, block=256, lds=roleb.LDS_BYTES, vgpr=roleb.VGPRS, takes=[{}]))
out = sys.argv[1] if len(sys.argv) > 1 else "out.s"
build(K, out)
```

```python
from common import *
import common

TILEB = 2304
SLOTB = 8 * TILEB
NSLOT = 3
L_FLAG = NSLOT * SLOTB
LDS_BYTES = L_FLAG + 64

S_KV, S_Q, S_O = 8, 12, 16
S_WS = 20
S_WAVE, S_HEAD, S_JB = 22, 23, 24
S_NXT, S_DMA = 26, 27
S_GO = 28
S_CNT, S_PASS, S_T0, S_T1 = 29, 30, 31, 32
S_LW = 33
S_GO0 = 36
S_EX = 38

V_L16 = 1
V_A0, V_A1 = 2, 3
V_VA = 2
V_AK = 4
V_Q = 10
V_K = 18
V_V = 30
V_P = 54
V_S = 62
V_O = 94
V_CN = 126
V_T = 158
VGPRS = 176

EXP = set()


def dma_chunk(k):
    k.I(f"""
    s_add_u32 m0, {s(S_DMA)}, {s(S_LW)}
    s_add_u32 {s(S_T0)}, {s(S_GO)}, 8192
    buffer_load_dwordx4 {v(V_L16)}, {s(S_KV, 4)}, {s(S_GO)} offen lds
    buffer_load_dwordx4 {v(V_L16)}, {s(S_KV, 4)}, {s(S_GO)} offen offset:1024 lds
    s_add_u32 m0, m0, {4 * TILEB}
    s_add_u32 {s(S_GO)}, {s(S_GO)}, 16384
    buffer_load_dwordx4 {v(V_L16)}, {s(S_KV, 4)}, {s(S_T0)} offen lds
    buffer_load_dwordx4 {v(V_L16)}, {s(S_KV, 4)}, {s(S_T0)} offen offset:1024 lds
    """)


def load_q(k):
    k.I(f"""
    s_lshl_b32 {s(S_T0)}, {s(S_HEAD)}, 6
    s_lshl_b32 {s(S_T1)}, {s(S_JB)}, 3
    s_add_u32 {s(S_T0)}, {s(S_T0)}, {s(S_T1)}
    s_lshl_b32 {s(S_T1)}, {s(S_WAVE)}, 1
    s_add_u32 {s(S_T0)}, {s(S_T0)}, {s(S_T1)}
    s_lshl_b32 {s(S_T0)}, {s(S_T0)}, 10
    buffer_load_dwordx4 {v(V_Q, 4)}, {v(V_L16)}, {s(S_Q, 4)}, {s(S_T0)} offen
    buffer_load_dwordx4 {v(V_Q + 4, 4)}, {v(V_L16)}, {s(S_Q, 4)}, {s(S_T0)} offen offset:1024
    """)


def next_slot(k, r):
    k.I(f"""
    s_add_u32 {s(r)}, {s(r)}, {SLOTB}
    s_cmp_eq_u32 {s(r)}, {NSLOT * SLOTB}
    s_cselect_b32 {s(r)}, 0, {s(r)}
    """)


def mfma(k, d, a_, b_, c):
    if "nopv" in EXP and V_O <= d < V_O + 32:
        return
    if "noqk" in EXP and d < V_O:
        return
    k.I(f"v_mfma_f32_32x32x16_bf16 {v(d, 16)}, {v(a_, 4)}, {v(b_, 4)}, {c}")


def dma_one(k, c, i):
    lds = (c % NSLOT) * SLOTB + (i >> 1) * 4 * TILEB
    go = c * 16384 + (i >> 1) * 8192
    k.I(f"""
    s_add_u32 m0, {s(S_LW)}, {lds}
    s_add_u32 {s(S_T0)}, {s(S_GO0)}, {go}
    buffer_load_dwordx4 {v(V_L16)}, {s(S_KV, 4)}, {s(S_T0)} offen offset:{(i & 1) * 1024} lds
    """)


def tile_off(t):
    return ((t >> 3) % NSLOT) * SLOTB + (t & 7) * TILEB


def subtile(k, t, z):
    S = V_S + 16 * z
    Sn = V_S + 16 * (1 - z)
    b, pb, nb, fb = t % 3, (t - 1) % 3, (t + 1) % 3, (t + 2) % 3
    O, Op = V_O + 16 * z, V_O + 16 * (1 - z)
    c_, u = t >> 3, t & 7
    rd = "nods" not in EXP and z == 0 and t + 2 < 64
    foff = tile_off(t + 2) if t + 2 < 64 else 0
    last = t == 63

    def e(i):
        k.I(f"v_exp_f32 {v(S + i)}, {v(S + i)}")

    def c(j):
        k.I(f"v_cvt_pk_bf16_f32 {v(V_P + j)}, {v(S + 2 * j)}, {v(S + 2 * j + 1)}")

    def dma_spot(n):
        if "nobar" in EXP or z == 0 or c_ + 2 > 7:
            return
        if u == 6:
            dma_one(k, c_ + 2, n)
        if u == 7:
            dma_one(k, c_ + 2, 2 + n)

    def pv2():
        mfma(k, Op, V_V + 8 * (pb if z == 0 else b) + 4, V_P + 4, v(Op, 16))
        if z == 0:
            if rd:
                k.I(f"ds_read_b128 {v(V_K + 4 * fb, 4)}, {v(V_AK)} offset:{foff}")
        elif "nowait" not in EXP and not last:
            k.I(f"s_waitcnt lgkmcnt({3 if t + 2 < 64 and 'nods' not in EXP else 0})")

    def qk():
        if z == 0:
            mfma(k, Sn, V_K + 4 * b, V_Q + 4, v(V_CN + 16, 16))
            if rd:
                k.I(f"ds_read_b128 {v(V_V + 8 * fb, 4)}, {v(V_A0)} offset:{foff}")
        elif not last:
            mfma(k, Sn, V_K + 4 * nb, V_Q, v(V_CN, 16))
            if u == 5 and c_ < 7 and "nobar" not in EXP:
                k.I("s_waitcnt vmcnt(0)")
                k.I("s_barrier")
                stamp(k, 2 + c_)
            dma_spot(0)

    def pv1():
        mfma(k, O, V_V + 8 * b, V_P, v(O, 16))
        if rd:
            k.I(f"ds_read_b128 {v(V_V + 8 * fb + 4, 4)}, {v(V_A1)} offset:{foff}")
        dma_spot(1)

    def c7p():
        k.I(f"v_cvt_pk_bf16_f32 {v(V_P + 7)}, {v(Sn + 14)}, {v(Sn + 15)}")

    if not common.A_CLUSTER:
        e(0); e(1); c7p(); e(2); e(3)
        pv2()
        c(0); e(4); e(5); c(1); e(6); e(7)
        qk()
        c(2); e(8); e(9); c(3); e(10); e(11)
        pv1()
        c(4); e(12); e(13); c(5); e(14); e(15); c(6)
    else:
        e(0); e(1); c7p(); e(2); e(3); c(0); e(4); e(5); c(1)
        pv2()
        e(6); e(7); c(2)
        qk()
        c(3); e(8); e(9)
        if z == 1:
            k.I("s_nop 0")
        pv1()
        e(10); e(11); c(4); e(12); e(13); c(5); e(14); e(15); c(6)


def gen_role(k, P="A"):
    T = V_T
    k.I(f"""
    s_load_dwordx2 {s(S_WS, 2)}, s[0:1], {KA_WS}
    v_lshrrev_b32 v1, 6, v0
    v_and_b32 v0, 63, v0
    s_and_b32 {s(S_T0)}, s2, 7
    v_readfirstlane_b32 {s(S_WAVE)}, v1
    s_lshl_b32 {s(S_T0)}, {s(S_T0)}, 2
    s_bfe_u32 {s(S_T1)}, s2, 0x20003
    s_add_u32 {s(S_HEAD)}, {s(S_T0)}, {s(S_T1)}
    s_bfe_u32 {s(S_JB)}, s2, 0x30005
    v_lshlrev_b32 {v(V_L16)}, 4, v0
    s_mul_i32 {s(S_LW)}, {s(S_WAVE)}, {TILEB}
    s_lshl_b32 {s(S_GO0)}, {s(S_HEAD)}, 6
    s_add_u32 {s(S_GO0)}, {s(S_GO0)}, {s(S_WAVE)}
    s_lshl_b32 {s(S_GO0)}, {s(S_GO0)}, 11
    s_mov_b32 {s(S_PASS)}, 0
    s_waitcnt lgkmcnt(0)
    """)
    stamp(k, 0)
    srd(k, S_KV, S_WS, 4 << 20, KVF)
    srd(k, S_Q, S_WS, 2 << 20, QF)
    srd(k, S_O, S_WS, 2 << 20, OF)
    k.I(f"""
    s_mov_b32 {s(S_GO)}, {s(S_GO0)}
    s_mov_b32 {s(S_DMA)}, 0
    """)
    dma_chunk(k)
    k.I(f"s_mov_b32 {s(S_DMA)}, {SLOTB}")
    dma_chunk(k)
    load_q(k)
    k.I(f"""
    v_lshrrev_b32 {v(T)}, 5, v0
    v_lshlrev_b32 {v(T)}, 8, {v(T)}
    v_and_b32 {v(T + 1)}, 15, v0
    v_lshl_add_u32 {v(T)}, {v(T + 1)}, 4, {v(T)}
    v_add_u32 {v(T)}, 1024, {v(T)}
    v_mov_b32 {v(T + 2)}, {2048 + 16}
    v_add_u32 {v(T + 3)}, -4, {v(T + 1)}
    v_cmp_gt_u32 vcc, 8, {v(T + 3)}
    v_mov_b32 {v(T + 4)}, {2048 + 80}
    s_nop 0
    v_cndmask_b32 {v(T + 2)}, {v(T + 2)}, {v(T + 4)}, vcc
    v_cmp_eq_u32 vcc, 0, {v(T + 1)}
    v_mov_b32 {v(T + 4)}, 2048
    s_nop 0
    v_cndmask_b32 {v(T + 2)}, {v(T + 2)}, {v(T + 4)}, vcc
    v_cmp_eq_u32 vcc, 4, {v(T + 1)}
    v_mov_b32 {v(T + 4)}, {2048 + 64}
    s_nop 0
    v_cndmask_b32 {v(T + 2)}, {v(T + 2)}, {v(T + 4)}, vcc
    v_and_b32 {v(T + 3)}, 16, v0
    v_cmp_eq_u32 vcc, 0, {v(T + 3)}
    v_add_u32 {v(T + 4)}, 512, {v(T)}
    s_nop 0
    v_cndmask_b32 {v(V_VA)}, {v(T + 2)}, {v(T)}, vcc
    v_cndmask_b32 {v(V_VA + 1)}, {v(T + 2)}, {v(T + 4)}, vcc
    """)
    k.I(f"""
    v_and_b32 {v(T + 1)}, 11, v0
    v_cmp_eq_u32 vcc, 0, {v(T + 1)}
    v_mov_b32 {v(T + 1)}, 0x3f803f80
    v_mov_b32 {v(T + 5)}, {L_FLAG}
    v_cndmask_b32 {v(T)}, 0, {v(T + 1)}, vcc
    v_mov_b32 {v(T + 1)}, {v(T)}
    v_mov_b32 {v(T + 2)}, {v(T)}
    v_mov_b32 {v(T + 3)}, {v(T)}
    v_add_u32 {v(T + 4)}, {s(S_LW)}, {v(V_L16)}
    v_mov_b32 {v(T + 6)}, 0
    s_mov_b64 exec, 0xffff
    """)
    for sl in range(NSLOT):
        for tt in range(2):
            k.I(f"ds_write_b128 {v(T + 4)}, {v(T, 4)} offset:{sl * SLOTB + tt * 4 * TILEB + 2048}")
    k.I(f"""
    ds_write_b32 {v(T + 5)}, {v(T + 6)}
    s_mov_b64 exec, -1
    """)
    for i in range(32):
        k.I(f"v_mov_b32 {v(V_CN + i)}, 0")
    k.L(f"{P}_PASS")
    for i in range(32):
        k.I(f"v_mov_b32 {v(V_O + i)}, 0")
    for i in range(8):
        k.I(f"v_mov_b32 {v(V_P + i)}, 0")
    for i in range(4):
        k.I(f"v_mov_b32 {v(V_V + 16 + 4 + i)}, 0")
    k.I(f"""
    v_mov_b32 {v(V_S + 16 + 14)}, 0
    v_mov_b32 {v(V_S + 16 + 15)}, 0
    v_mov_b32 {v(V_AK)}, {v(V_L16)}
    s_waitcnt vmcnt(6) lgkmcnt(0)
    """)
    k.I("s_barrier")
    stamp(k, 1)
    k.I(f"""
    ds_read_b128 {v(V_K, 4)}, {v(V_AK)}
    ds_read_b128 {v(V_V, 4)}, {v(V_A0)}
    ds_read_b128 {v(V_V + 4, 4)}, {v(V_A1)}
    ds_read_b128 {v(V_K + 4, 4)}, {v(V_AK)} offset:{TILEB}
    ds_read_b128 {v(V_V + 8, 4)}, {v(V_A0)} offset:{TILEB}
    ds_read_b128 {v(V_V + 12, 4)}, {v(V_A1)} offset:{TILEB}
    s_waitcnt vmcnt(0) lgkmcnt(0)
    """)
    mfma(k, V_S, V_K, V_Q, v(V_CN, 16))
    if common.A_PRIO_LOOP is not None:
        k.I(f"s_setprio {common.A_PRIO_LOOP}")
    k.nop(12)
    for t in range(64):
        for z in range(2):
            subtile(k, t, z)
    stamp(k, 9)
    k.I(f"v_cvt_pk_bf16_f32 {v(V_P + 7)}, {v(V_S + 16 + 14)}, {v(V_S + 16 + 15)}")
    k.nop(2)
    mfma(k, V_O + 16, V_V + 8 * (63 % 3) + 4, V_P + 4, v(V_O + 16, 16))
    k.nop(12)
    k.I(f"""
    v_rcp_f32 {v(T)}, {v(V_O + 8)}
    v_rcp_f32 {v(T + 1)}, {v(V_O + 16 + 8)}
    s_cmp_lg_u32 {s(S_PASS)}, {1 if EXP else 0}
    s_cbranch_scc1 {P}_STORE
    v_mul_f32 {v(T + 2)}, 0, {v(V_O + 8)}
    """)
    for z in range(2):
        for i in range(9):
            if z == 0 and i == 8:
                continue
            k.I(f"v_fma_f32 {v(T + 2)}, {v(V_O + 16 * z + i)}, 0, {v(T + 2)}")
    k.I(f"""
    v_cmp_u_f32 vcc, {v(T + 2)}, {v(T + 2)}
    s_mov_b64 {s(S_EX, 2)}, vcc
    v_min_f32 {v(T + 2)}, {v(V_O + 8)}, {v(V_O + 16 + 8)}
    v_mov_b32 {v(T + 3)}, {hx(f2u(2.0 ** -40))}
    v_cmp_nge_f32 vcc, {v(T + 2)}, {v(T + 3)}
    s_or_b64 vcc, vcc, {s(S_EX, 2)}
    s_cbranch_vccz {P}_OK
    v_mov_b32 {v(T + 2)}, {L_FLAG}
    v_mov_b32 {v(T + 3)}, 1
    ds_write_b32 {v(T + 2)}, {v(T + 3)}
    """)
    k.L(f"{P}_OK")
    k.I(f"""
    s_waitcnt lgkmcnt(0)
    s_barrier
    v_mov_b32 {v(T + 2)}, {L_FLAG}
    ds_read_b32 {v(T + 3)}, {v(T + 2)}
    s_waitcnt lgkmcnt(0)
    v_readfirstlane_b32 {s(S_T0)}, {v(T + 3)}
    s_cmp_lg_u32 {s(S_T0)}, 0
    s_cbranch_scc1 {P}_SLOW
    """)
    k.L(f"{P}_STORE")
    k.I(f"""
    s_lshl_b32 {s(S_T0)}, {s(S_JB)}, 3
    s_lshl_b32 {s(S_T1)}, {s(S_WAVE)}, 1
    s_add_u32 {s(S_T0)}, {s(S_T0)}, {s(S_T1)}
    s_lshl_b32 {s(S_T0)}, {s(S_T0)}, 5
    s_add_u32 {s(S_T0)}, {s(S_T0)}, {s(S_HEAD)}
    s_lshl_b32 {s(S_T0)}, {s(S_T0)}, 10
    """)
    for z in range(2):
        for i in range(8):
            k.I(f"v_mul_f32 {v(V_O + 16 * z + i)}, {v(V_O + 16 * z + i)}, {v(T + z)}")
        for i in range(4):
            k.I(f"v_cvt_pk_bf16_f32 {v(V_P + 4 * z + i)}, {v(V_O + 16 * z + 2 * i)}, {v(V_O + 16 * z + 2 * i + 1)}")
        k.I(f"buffer_store_dwordx4 {v(V_P + 4 * z, 4)}, {v(V_L16)}, {s(S_O, 4)}, {s(S_T0)} offen {common.O_STORE_MODS}")
        if z == 0:
            k.I(f"s_add_u32 {s(S_T0)}, {s(S_T0)}, {32 * 1024}")
    k.L(f"{P}_DONE")


def gen_slow(k, P="A"):
    k.L(f"{P}_SLOW")
    M = V_T + 4
    k.I(f"""
    s_mov_b32 {s(S_PASS)}, 1
    v_mov_b32 {v(M)}, 0xff800000
    v_mov_b32 {v(M + 1)}, 0xff800000
    s_mov_b32 {s(S_GO)}, {s(S_GO0)}
    s_mov_b32 {s(S_CNT)}, 0
    """)
    k.L(f"{P}_SLOW_C")
    k.I(f"""
    s_barrier
    s_mov_b32 {s(S_DMA)}, 0
    """)
    dma_chunk(k)
    k.I(f"""
    s_waitcnt vmcnt(0)
    s_barrier
    v_mov_b32 {v(V_AK)}, {v(V_L16)}
    s_mov_b32 {s(S_T1)}, 0
    """)
    k.L(f"{P}_SLOW_T")
    k.I(f"""
    ds_read_b128 {v(V_K, 4)}, {v(V_AK)}
    s_waitcnt lgkmcnt(0)
    """)
    mfma(k, V_S, V_K, V_Q, "0")
    mfma(k, V_S + 16, V_K, V_Q + 4, "0")
    k.I(f"v_add_u32 {v(V_AK)}, {TILEB}, {v(V_AK)}")
    k.nop(12)
    for z in range(2):
        for i in range(8):
            k.I(f"v_max3_f32 {v(M + z)}, {v(V_S + 16 * z + 2 * i)}, {v(V_S + 16 * z + 2 * i + 1)}, {v(M + z)}")
    k.I(f"""
    s_add_u32 {s(S_T1)}, {s(S_T1)}, 1
    s_cmp_lt_u32 {s(S_T1)}, 8
    s_cbranch_scc1 {P}_SLOW_T
    s_add_u32 {s(S_CNT)}, {s(S_CNT)}, 1
    s_cmp_lt_u32 {s(S_CNT)}, 8
    s_cbranch_scc1 {P}_SLOW_C
    """)
    for z in range(2):
        k.I(f"v_mov_b32 {v(M + 2)}, {v(M + z)}")
        k.nop(2)
        k.I(f"""
        v_permlane32_swap_b32 {v(M + 2)}, {v(M + z)}
        v_max_f32 {v(M + z)}, {v(M + z)}, {v(M + 2)}
        """)
        for i in range(16):
            k.I(f"v_sub_f32 {v(V_CN + 16 * z + i)}, 0, {v(M + z)}")
    k.I(f"""
    s_barrier
    s_mov_b32 {s(S_GO)}, {s(S_GO0)}
    s_mov_b32 {s(S_DMA)}, 0
    """)
    dma_chunk(k)
    k.I(f"s_mov_b32 {s(S_DMA)}, {SLOTB}")
    dma_chunk(k)
    load_q(k)
    k.I(f"s_branch {P}_PASS")


NAME = "k2a_kernel"
BLOCK = 256


def gen():
    k = Asm()
    kernel_header(k, NAME)
    k.I("""
    s_cmp_ge_u32 s2, 256
    s_cbranch_scc1 K2A_END
    """)
    gen_role(k)
    stamp_flush(k, 10, S_WS, S_WAVE, 1)
    k.L("K2A_END")
    k.I("s_endpgm")
    gen_slow(k)
    return k


TAKES = [{}, {"A_SLOW": [True, False], "A_STORE": [False, True]}, {"A_OK": True}]
```

```python
import struct
from asmlib import *

QF = 0
KVF = 2 << 20
HSF = 6 << 20
X1F = 8 << 20
OF = 10 << 20
PART = 12 << 20
GOFF = 28 << 20
STOFF = GOFF + 65536
CS3 = STOFF + (2048 * 128)
FLAGS = 29 << 20
WS_USED = 30 << 20

KA_X, KA_WQKV, KA_WO, KA_BX, KA_W1, KA_W2, KA_W3, KA_W4, KA_GATE, KA_OUT, KA_DBG, KA_WS = [8 * i for i in range(12)]

SRD3 = 0x00020000


def f2u(x):
    return struct.unpack("<I", struct.pack("<f", x))[0]


def hx(x):
    return f"0x{x & 0xffffffff:x}"


def srd(k, dst, base_lo, nbytes, add=0):
    if add:
        k.I(f"s_add_u32 {s(dst)}, {s(base_lo)}, {hx(add)}")
        k.I(f"s_addc_u32 {s(dst + 1)}, {s(base_lo + 1)}, 0")
    else:
        k.I(f"s_mov_b32 {s(dst)}, {s(base_lo)}")
        k.I(f"s_mov_b32 {s(dst + 1)}, {s(base_lo + 1)}")
    k.I(f"s_mov_b32 {s(dst + 2)}, {hx(nbytes)}")
    k.I(f"s_mov_b32 {s(dst + 3)}, {hx(SRD3)}")


def kernel_header(k, name):
    k.raw(f".globl {name}\n.p2align 8\n.type {name},@function")
    k.L(name)


def kernel_desc(name, vgpr, sgpr=96, accum=None):
    accum = accum if accum is not None else ((vgpr + 3) // 4) * 4
    return f""".p2align 6
.amdhsa_kernel {name}
  .amdhsa_next_free_vgpr {vgpr}
  .amdhsa_next_free_sgpr {sgpr}
  .amdhsa_accum_offset {accum}
  .amdhsa_group_segment_fixed_size 0
  .amdhsa_kernarg_size 96
  .amdhsa_user_sgpr_count 2
  .amdhsa_user_sgpr_kernarg_segment_ptr 1
  .amdhsa_system_sgpr_workgroup_id_x 1
  .amdhsa_float_denorm_mode_32 3
.end_amdhsa_kernel
"""


def sum_halves(k, val, tmp):
    k.I(f"v_mov_b32 {v(tmp)}, {v(val)}")
    k.nop(2)
    k.I(f"v_permlane32_swap_b32 {v(tmp)}, {v(val)}")
    k.I(f"v_add_f32 {v(val)}, {v(val)}, {v(tmp)}")


LOG2E = 1.4426950408889634
GELU_C0 = -2.0 * 0.7978845608028654 * LOG2E
GELU_C1 = GELU_C0 * 0.044715


def gelu_pairs(k, pairs, tmp, c0pair, c1pair):
    n = len(pairs)
    for i, y in enumerate(pairs):
        k.I(f"v_pk_mul_f32 {v(tmp + 2 * i, 2)}, {v(y, 2)}, {v(y, 2)}")
    for i, y in enumerate(pairs):
        k.I(f"v_pk_fma_f32 {v(tmp + 2 * i, 2)}, {v(tmp + 2 * i, 2)}, {s(c1pair, 2)}, {v(c0pair, 2)}")
    for i, y in enumerate(pairs):
        k.I(f"v_pk_mul_f32 {v(tmp + 2 * i, 2)}, {v(tmp + 2 * i, 2)}, {v(y, 2)}")
    for i in range(2 * n):
        k.I(f"v_exp_f32 {v(tmp + i)}, {v(tmp + i)}")
    for i in range(n):
        k.I(f"v_pk_add_f32 {v(tmp + 2 * i, 2)}, {v(tmp + 2 * i, 2)}, 1.0 op_sel_hi:[1,0]")
    for i in range(2 * n):
        k.I(f"v_rcp_f32 {v(tmp + i)}, {v(tmp + i)}")
    for i, y in enumerate(pairs):
        k.I(f"v_pk_mul_f32 {v(y, 2)}, {v(y, 2)}, {v(tmp + 2 * i, 2)}")


PROF = 40 << 20
PROF_ON = False
S_ST = 68


def stamp(k, i):
    if PROF_ON:
        k.I("s_memrealtime s[86:87]")
        if i == 0:
            k.I("s_memtime s[88:89]")
        k.I("s_waitcnt lgkmcnt(0)")
        k.I(f"s_mov_b32 {s(S_ST + i)}, s86")


def stamp_flush(k, n, ws_pair, wave_s, kid):
    if not PROF_ON:
        return
    k.I("s_waitcnt vmcnt(0) lgkmcnt(0)")
    k.I("s_memrealtime s[86:87]")
    k.I("s_memtime s[84:85]")
    k.I("s_waitcnt lgkmcnt(0)")
    k.I(f"s_mov_b32 {s(S_ST + n)}, s86")
    k.I(f"s_sub_u32 {s(S_ST + n + 1)}, s84, s88")
    srd(k, 92, ws_pair, 1 << 20, PROF + kid * (1 << 20))
    k.I(f"s_lshl_b32 s90, s2, 4")
    k.I(f"s_add_u32 s90, s90, {s(wave_s)}")
    k.I(f"s_lshl_b32 s90, s90, 6")
    k.I("s_mov_b64 exec, 1")
    for i in range(n + 2):
        k.I(f"v_mov_b32 v120, {s(S_ST + i)}")
        k.I(f"v_mov_b32 v121, {4 * i}")
        k.I(f"buffer_store_dword v120, v121, s[92:95], s90 offen")
        k.I("s_nop 1")
    k.I("s_waitcnt vmcnt(0)")


O_STORE_MODS = ""
K1_STORE_MODS = ""
B_STORE_MODS = ""
K1_PREFETCH = False


F_X1 = 0
F_PT = 32
F_O = 64
NFLAGS = 72


def signal(k, ws_pair, idx_s, base_idx, wave_s, tmp_s, vt, barrier=True):
    k.I("s_waitcnt vmcnt(0)")
    if barrier:
        k.I("s_barrier")
    lab = k.uid("SIG")
    k.I(f"""
    s_cmp_lg_u32 {s(wave_s)}, 0
    s_cbranch_scc1 {lab}
    s_add_u32 {s(tmp_s)}, {s(ws_pair)}, {hx(FLAGS + base_idx * 128)}
    s_addc_u32 {s(tmp_s + 1)}, {s(ws_pair + 1)}, 0
    s_lshl_b32 vcc_lo, {s(idx_s)}, 7
    v_mov_b32 {v(vt)}, vcc_lo
    v_mov_b32 {v(vt + 1)}, 1
    s_mov_b64 exec, 1
    global_atomic_add {v(vt)}, {v(vt + 1)}, {s(tmp_s, 2)} sc1
    s_mov_b64 exec, -1
    """)
    k.L(lab)


def wait_flag(k, ws_pair, idx_s, base_idx, target, wave_s, tmp_s, vt):
    lab = k.uid("WT")
    k.I(f"""
    s_cmp_lg_u32 {s(wave_s)}, 0
    s_cbranch_scc1 {lab}_done
    s_add_u32 {s(tmp_s)}, {s(ws_pair)}, {hx(FLAGS + base_idx * 128)}
    s_addc_u32 {s(tmp_s + 1)}, {s(ws_pair + 1)}, 0
    s_lshl_b32 vcc_lo, {s(idx_s)}, 7
    v_mov_b32 {v(vt)}, vcc_lo
    s_mov_b32 vcc_hi, 0x40000
    """)
    k.L(lab)
    k.I(f"""
    global_load_dword {v(vt + 1)}, {v(vt)}, {s(tmp_s, 2)} sc1
    s_waitcnt vmcnt(0)
    v_readfirstlane_b32 vcc_lo, {v(vt + 1)}
    s_cmp_ge_u32 vcc_lo, {target}
    s_cbranch_scc1 {lab}_done
    s_sub_u32 vcc_hi, vcc_hi, 1
    s_cmp_eq_u32 vcc_hi, 0
    s_cbranch_scc1 {lab}_done
    s_sleep 2
    s_branch {lab}
    """)
    k.L(lab + "_done")
    k.I("s_barrier")
B_PRIO = 2
A_PRIO = 0
B_LOOP_PRIO = None
A_PRIO_LOOP = None
K2X = set()
A_CLUSTER = False
```

```python
from common import *
import common

NAME = "k1_kernel"
SLOT = 32768
L_GATE = 131072
L_STAT = L_GATE + 1024
L_CSUM = L_STAT + 1024
LDS_BYTES = L_CSUM + 512
QSCALE = 0.25 * LOG2E

S_X, S_W, S_O, S_GW, S_GO = 8, 12, 16, 20, 24
S_WS = 28
S_W1P, S_GP = 30, 32
S_RB, S_CB, S_WAVE, S_TYPE = 34, 35, 36, 37
S_RS, S_RS16, S_T0, S_T1, S_T2 = 38, 39, 40, 41, 42
S_XB, S_WCUR, S_LW, S_LDSW = 43, 44, 45, 46
S_OB = 47
S_C1 = 48
S_EX = 50
S_WR, S_WC = 52, 53


def gen():
    k = Asm()
    kernel_header(k, NAME)
    k.I(f"""
    s_cmp_ge_u32 s2, 256
    s_cbranch_scc1 K1_END
    s_load_dwordx4 s[4:7], s[0:1], {KA_X}
    s_load_dwordx2 {s(S_W1P, 2)}, s[0:1], {KA_W1}
    s_load_dwordx2 {s(S_GP, 2)}, s[0:1], {KA_GATE}
    s_load_dwordx2 {s(S_WS, 2)}, s[0:1], {KA_WS}
    v_lshrrev_b32 v1, 6, v0
    v_and_b32 v0, 63, v0
    s_and_b32 {s(S_T0)}, s2, 7
    v_readfirstlane_b32 {s(S_WAVE)}, v1
    s_lshr_b32 {s(S_T1)}, s2, 3
    s_and_b32 {s(S_RB)}, {s(S_T0)}, 3
    s_lshl_b32 {s(S_RB)}, {s(S_RB)}, 2
    s_and_b32 {s(S_T2)}, {s(S_T1)}, 3
    s_add_u32 {s(S_RB)}, {s(S_RB)}, {s(S_T2)}
    s_lshr_b32 {s(S_T0)}, {s(S_T0)}, 2
    s_lshr_b32 {s(S_T2)}, {s(S_T1)}, 2
    s_cmp_lt_u32 {s(S_T1)}, 8
    s_cbranch_scc1 K1_DEC_H
    s_mul_i32 {s(S_CB)}, {s(S_T0)}, 6
    s_add_u32 {s(S_CB)}, {s(S_CB)}, {s(S_T2)}
    s_sub_u32 {s(S_CB)}, {s(S_CB)}, 2
    s_branch K1_DEC_DONE
    """)
    k.L("K1_DEC_H")
    k.I(f"""
    s_lshl_b32 {s(S_CB)}, {s(S_T0)}, 1
    s_add_u32 {s(S_CB)}, {s(S_CB)}, {s(S_T2)}
    s_add_u32 {s(S_CB)}, {s(S_CB)}, 12
    """)
    k.L("K1_DEC_DONE")
    k.I(f"""
    s_lshr_b32 {s(S_TYPE)}, {s(S_CB)}, 2
    s_waitcnt lgkmcnt(0)
    """)
    stamp(k, 0)
    srd(k, S_X, 4, 2048 * 512 * 2)
    k.I(f"""
    s_cmp_eq_u32 {s(S_TYPE)}, 3
    s_cselect_b32 {s(S_W)}, {s(S_W1P)}, s6
    s_cselect_b32 {s(S_W + 1)}, {s(S_W1P + 1)}, s7
    s_mov_b32 {s(S_W + 2)}, {hx(512 * 1536 * 2)}
    s_cselect_b32 {s(S_W + 2)}, {hx(512 * 512 * 2)}, {s(S_W + 2)}
    s_mov_b32 {s(S_W + 3)}, {hx(SRD3)}
    s_mov_b32 {s(S_RS)}, 3072
    s_cselect_b32 {s(S_RS)}, 1024, {s(S_RS)}
    s_cselect_b32 {s(S_T0)}, 12, 0
    s_sub_u32 {s(S_T0)}, {s(S_CB)}, {s(S_T0)}
    s_lshl_b32 {s(S_WCUR)}, {s(S_T0)}, 8
    s_lshl_b32 {s(S_RS16)}, {s(S_RS)}, 4
    s_cmp_ge_u32 {s(S_WAVE)}, 8
    s_cbranch_scc1 K1_STATS
    s_cmp_ge_u32 {s(S_WAVE)}, 4
    s_cbranch_scc1 K1_LOADER
    """)
    compute(k)
    loader(k)
    stats_wave(k)
    k.L("K1_END")
    k.I("s_endpgm")
    return k


V_AX = 4
V_AW = 12
V_FX = 16
V_FW = 32
V_ACC = 48
V_T = 112
V_L31, V_H = 2, 3


def frag_addr_setup(k, rowbase_s, quarter_s_list, ax, aw):
    t0, t1, t2, t3 = V_T, V_T + 1, V_T + 2, V_T + 3
    k.I(f"""
    v_and_b32 {v(V_L31)}, 31, v0
    v_lshrrev_b32 {v(V_H)}, 5, v0
    v_add_u32 {v(t0)}, {s(rowbase_s)}, {v(V_L31)}
    v_lshlrev_b32 {v(t0)}, 7, {v(t0)}
    v_bfe_u32 {v(t1)}, v0, 1, 3
    """)
    for st in range(4):
        k.I(f"""
        v_add_u32 {v(t2)}, {2 * st}, {v(V_H)}
        v_xor_b32 {v(t2)}, {v(t2)}, {v(t1)}
        v_lshl_add_u32 {v(ax + st)}, {v(t2)}, 4, {v(t0)}
        v_add_u32 {v(ax + 4 + st)}, 0x10000, {v(ax + st)}
        """)
    k.I(f"""
    v_bfe_u32 {v(t0)}, v0, 2, 2
    v_lshl_add_u32 {v(t1)}, {v(V_H)}, 3, {v(t0)}
    v_lshlrev_b32 {v(t1)}, 8, {v(t1)}
    v_bfe_u32 {v(t2)}, v0, 4, 1
    v_lshl_add_u32 {v(t1)}, {v(t2)}, 5, {v(t1)}
    v_and_b32 {v(t2)}, 3, v0
    v_lshl_add_u32 {v(t1)}, {v(t2)}, 3, {v(t1)}
    v_add_u32 {v(t1)}, 16384, {v(t1)}
    """)
    n = len(quarter_s_list)
    for i, qs in enumerate(quarter_s_list):
        k.I(f"""
        v_xor_b32 {v(t2)}, {s(qs)}, {v(t0)}
        v_lshl_add_u32 {v(aw + i)}, {v(t2)}, 6, {v(t1)}
        v_add_u32 {v(aw + n + i)}, 0x10000, {v(aw + i)}
        """)


V_AXB = 144
V_FG = 152
V_GA = 160
V_SX, V_SQ, V_GD, V_CS, V_ONES = 162, 163, 164, 165, 166
V_JUNK = 144


def reads_for(j, stats=False):
    st, sidx = j // 4, j % 4
    slot = st % 4
    hi = slot // 2
    so = (slot % 2) * SLOT
    b = j & 1
    g1, g2 = [], []
    xa = V_AX + 4 * hi + sidx
    g1.append(f"ds_read_b64_tr_b16 {v(V_FW + 8 * b + 0, 2)}, {v(V_AW + 2 * hi + 0)} offset:{so + sidx * 4096}")
    g1.append(f"ds_read_b64_tr_b16 {v(V_FW + 8 * b + 2, 2)}, {v(V_AW + 2 * hi + 0)} offset:{so + sidx * 4096 + 1024}")
    g1.append(f"ds_read_b128 {v(V_FX + 8 * b + 0, 4)}, {v(xa)} offset:{so}")
    if stats:
        g2.append(f"ds_read_b128 {v(V_FX + 8 * b + 4, 4)}, {v(V_AXB + 4 * hi + sidx)} offset:{so}")
    else:
        g2.append(f"ds_read_b128 {v(V_FX + 8 * b + 4, 4)}, {v(xa)} offset:{so + 4096}")
    g2.append(f"ds_read_b64_tr_b16 {v(V_FW + 8 * b + 4, 2)}, {v(V_AW + 2 * hi + 1)} offset:{so + sidx * 4096}")
    g2.append(f"ds_read_b64_tr_b16 {v(V_FW + 8 * b + 6, 2)}, {v(V_AW + 2 * hi + 1)} offset:{so + sidx * 4096 + 1024}")
    g3 = [f"ds_read_b128 {v(V_FG + 4 * b, 4)}, {v(V_GA)} offset:{j * 32}"] if stats else []
    return g1, g2, g3


def acc(ct, rt):
    return V_ACC + 32 * ct + 16 * rt


def mainloop(k, transposed, stats=False):
    k.I("s_barrier")
    stamp(k, 1)
    g1, g2, g3 = reads_for(0, stats)
    for t in g1 + g2 + g3:
        k.I(t)
    for j in range(32):
        b = j & 1
        st, sidx = j // 4, j % 4

        def mf(ct, rt):
            fw = v(V_FW + 8 * b + 4 * ct, 4)
            fx = v(V_FX + 8 * b + 4 * rt, 4)
            c = "0" if j == 0 else v(acc(ct, rt), 16)
            A, B = (fw, fx) if transposed else (fx, fw)
            k.I(f"v_mfma_f32_32x32x16_bf16 {v(acc(ct, rt), 16)}, {A}, {B}, {c}")

        def dots(i):
            if stats:
                k.I(f"v_dot2c_f32_bf16 {v(V_SX)}, {v(V_FX + 8 * b + i)}, {v(V_ONES)}")
                k.I(f"v_dot2c_f32_bf16 {v(V_SQ)}, {v(V_FX + 8 * b + i)}, {v(V_FX + 8 * b + i)}")
                k.I(f"v_dot2c_f32_bf16 {v(V_GD)}, {v(V_FX + 8 * b + i)}, {v(V_FG + 4 * b + i)}")
                k.I(f"v_dot2c_f32_bf16 {v(V_CS)}, {v(V_FW + 8 * b + i)}, {v(V_ONES)}")

        k.I("s_waitcnt lgkmcnt(0)")
        mf(0, 0)
        if sidx == 3 and st < 7:
            k.I("s_barrier")
        if j + 1 < 32:
            g1, g2, g3 = reads_for(j + 1, stats)
            for t in g1:
                k.I(t)
        dots(0)
        mf(0, 1)
        if j + 1 < 32:
            for t in g2:
                k.I(t)
        dots(1)
        mf(1, 0)
        if j + 1 < 32:
            for t in g3:
                k.I(t)
        dots(2)
        mf(1, 1)
        dots(3)
        if j == 15:
            stamp(k, 2)
    stamp(k, 3)


def prefetch(k):
    T = V_T
    SP = 56
    k.I(f"""
    s_cmp_lg_u32 {s(S_WAVE)}, 0
    s_cbranch_scc1 K1_NOPF
    s_lshr_b32 {s(S_T0)}, s2, 3
    s_and_b32 {s(S_T1)}, s2, 3
    s_lshl_b32 {s(S_T1)}, {s(S_T1)}, 9
    s_lshl_b32 {s(S_T2)}, {s(S_T0)}, 4
    s_add_u32 {s(S_T1)}, {s(S_T1)}, {s(S_T2)}
    v_and_b32 {v(T)}, 15, v0
    v_add_u32 {v(T + 1)}, {s(S_T1)}, {v(T)}
    v_lshlrev_b32 {v(T + 1)}, 10, {v(T + 1)}
    v_lshrrev_b32 {v(T + 2)}, 4, v0
    v_lshl_add_u32 {v(T + 3)}, {v(T + 2)}, 7, {v(T + 1)}
    buffer_load_dword {v(V_JUNK)}, {v(T + 3)}, {s(S_X, 4)}, 0 offen offset:256
    v_and_b32 {v(T + 4)}, 1, {v(T + 2)}
    v_lshl_add_u32 {v(T + 3)}, {v(T + 4)}, 7, {v(T + 1)}
    buffer_load_dword {v(V_JUNK + 1)}, {v(T + 3)}, {s(S_X, 4)}, 0 offen offset:768
    s_mul_i32 {s(S_T0)}, {s(S_T0)}, 12
    s_add_u32 {s(S_T0)}, {s(S_T0)}, 128
    s_bfe_u32 {s(S_T1)}, s2, 0x10002
    """)
    srd(k, SP, 6, 512 * 1536 * 2)
    k.I(f"""
    v_add_u32 {v(T + 3)}, {s(S_T0)}, {v(T + 2)}
    s_mov_b32 {s(S_T2)}, 3072
    v_mul_lo_u32 {v(T + 3)}, {v(T + 3)}, {s(S_T2)}
    v_min_u32 {v(T + 4)}, 11, {v(T)}
    v_lshl_add_u32 {v(T + 3)}, {v(T + 4)}, 7, {v(T + 3)}
    s_mul_i32 {s(S_T2)}, {s(S_T1)}, 1536
    """)
    for m in range(3):
        k.I(f"buffer_load_dword {v(V_JUNK + 2 + m)}, {v(T + 3)}, {s(SP, 4)}, {s(S_T2)} offen")
        if m < 2:
            k.I(f"s_add_u32 {s(S_T2)}, {s(S_T2)}, {4 * 3072}")
    srd(k, SP, S_W1P, 512 * 512 * 2)
    k.I(f"""
    v_lshrrev_b32 {v(T + 3)}, 2, v0
    v_min_u32 {v(T + 3)}, 11, {v(T + 3)}
    v_add_u32 {v(T + 3)}, {s(S_T0)}, {v(T + 3)}
    v_lshlrev_b32 {v(T + 3)}, 10, {v(T + 3)}
    v_and_b32 {v(T + 4)}, 3, v0
    v_lshl_add_u32 {v(T + 3)}, {v(T + 4)}, 7, {v(T + 3)}
    s_lshl_b32 {s(S_T2)}, {s(S_T1)}, 9
    buffer_load_dword {v(V_JUNK + 5)}, {v(T + 3)}, {s(SP, 4)}, {s(S_T2)} offen
    """)
    k.L("K1_NOPF")


def compute(k):
    k.I(f"""
    s_lshr_b32 {s(S_WR)}, {s(S_WAVE)}, 1
    s_and_b32 {s(S_WC)}, {s(S_WAVE)}, 1
    s_lshl_b32 {s(S_T0)}, {s(S_WR)}, 6
    s_lshl_b32 {s(S_T1)}, {s(S_WC)}, 1
    s_add_u32 {s(S_T2)}, {s(S_T1)}, 1
    """)
    if common.K1_PREFETCH:
        prefetch(k)
        k.I(f"""
        s_lshl_b32 {s(S_T0)}, {s(S_WR)}, 6
        s_lshl_b32 {s(S_T1)}, {s(S_WC)}, 1
        s_add_u32 {s(S_T2)}, {s(S_T1)}, 1
        """)
    frag_addr_setup(k, S_T0, [S_T1, S_T2], V_AX, V_AW)
    k.I(f"""
    s_cmp_eq_u32 {s(S_TYPE)}, 2
    s_cbranch_scc1 K1_VTYPE
    """)
    mainloop(k, True)
    k.I("s_waitcnt vmcnt(0)")
    k.I(f"""
    s_cmp_eq_u32 {s(S_TYPE)}, 3
    s_cbranch_scc1 K1_EPI_H
    """)
    k.I(f"""
    s_and_b32 {s(S_T0)}, {s(S_CB)}, 3
    s_lshl_b32 {s(S_T0)}, {s(S_T0)}, 3
    s_lshl_b32 {s(S_T1)}, {s(S_WC)}, 2
    s_add_u32 {s(S_T0)}, {s(S_T0)}, {s(S_T1)}
    s_lshl_b32 {s(S_T0)}, {s(S_T0)}, 6
    s_lshl_b32 {s(S_T1)}, {s(S_RB)}, 2
    s_add_u32 {s(S_T0)}, {s(S_T0)}, {s(S_T1)}
    s_lshl_b32 {s(S_T1)}, {s(S_WR)}, 1
    s_add_u32 {s(S_OB)}, {s(S_T0)}, {s(S_T1)}
    v_lshlrev_b32 v1, 4, v0
    s_cmp_eq_u32 {s(S_TYPE)}, 0
    s_cbranch_scc0 K1_EPI_K
    """)
    srd(k, S_O, S_WS, 2 << 20, QF)
    k.I(f"""
    s_lshl_b32 {s(S_OB)}, {s(S_OB)}, 10
    s_mov_b32 {s(S_C1)}, {hx(f2u(QSCALE))}
    s_mov_b32 {s(S_C1 + 1)}, {hx(f2u(QSCALE))}
    """)
    k.nop(4)
    n = 0
    for ct in range(2):
        for rt in range(2):
            for hf in range(2):
                A = acc(ct, rt) + 8 * hf
                T = V_T + 8 * (n & 1)
                for i in range(4):
                    k.I(f"v_pk_mul_f32 {v(A + 2 * i, 2)}, {v(A + 2 * i, 2)}, {s(S_C1, 2)}")
                for i in range(4):
                    k.I(f"v_cvt_pk_bf16_f32 {v(T + i)}, {v(A + 2 * i)}, {v(A + 2 * i + 1)}")
                k.I(f"s_add_u32 {s(S_T0)}, {s(S_OB)}, {((2 * ct + hf) * 64 + rt) * 1024}")
                k.I(f"buffer_store_dwordx4 {v(T, 4)}, v1, {s(S_O, 4)}, {s(S_T0)} offen {common.K1_STORE_MODS}")
                n += 1
    stamp_flush(k, 4, S_WS, S_WAVE, 0)
    k.I("s_endpgm")
    k.L("K1_EPI_K")
    srd(k, S_O, S_WS, 4 << 20, KVF)
    k.I(f"s_lshl_b32 {s(S_OB)}, {s(S_OB)}, 11")
    k.nop(4)
    n = 0
    for ct in range(2):
        for rt in range(2):
            for hf in range(2):
                A = acc(ct, rt) + 8 * hf
                T = V_T + 8 * (n & 1)
                for i in range(4):
                    k.I(f"v_cvt_pk_bf16_f32 {v(T + i)}, {v(A + 2 * i)}, {v(A + 2 * i + 1)}")
                k.I(f"s_add_u32 {s(S_T0)}, {s(S_OB)}, {((2 * ct + hf) * 64 + rt) * 2048}")
                k.I(f"buffer_store_dwordx4 {v(T, 4)}, v1, {s(S_O, 4)}, {s(S_T0)} offen {common.K1_STORE_MODS}")
                n += 1
    stamp_flush(k, 4, S_WS, S_WAVE, 0)
    k.I("s_endpgm")

    k.L("K1_VTYPE")
    mainloop(k, False)
    k.I("s_waitcnt vmcnt(0)")
    srd(k, S_O, S_WS, 4 << 20, KVF)
    k.I(f"""
    s_and_b32 {s(S_T0)}, {s(S_CB)}, 3
    s_lshl_b32 {s(S_T0)}, {s(S_T0)}, 3
    s_lshl_b32 {s(S_T1)}, {s(S_WC)}, 2
    s_add_u32 {s(S_T0)}, {s(S_T0)}, {s(S_T1)}
    s_lshl_b32 {s(S_T0)}, {s(S_T0)}, 6
    s_lshl_b32 {s(S_T1)}, {s(S_RB)}, 2
    s_add_u32 {s(S_T0)}, {s(S_T0)}, {s(S_T1)}
    s_lshl_b32 {s(S_T1)}, {s(S_WR)}, 1
    s_add_u32 {s(S_OB)}, {s(S_T0)}, {s(S_T1)}
    s_lshl_b32 {s(S_OB)}, {s(S_OB)}, 11
    v_bfe_u32 v1, v0, 4, 1
    v_lshlrev_b32 v1, 17, v1
    v_lshl_add_u32 v1, {v(V_H)}, 8, v1
    v_and_b32 {v(V_T)}, 15, v0
    v_lshl_add_u32 v1, {v(V_T)}, 4, v1
    v_add_u32 v1, 1024, v1
    """)
    n = 0
    for ct in range(2):
        for rt in range(2):
            for st in range(2):
                A = acc(ct, rt) + 8 * st
                T = V_T + 8 * (n & 1)
                for i in range(4):
                    k.I(f"v_cvt_pk_bf16_f32 {v(T + i)}, {v(A + 2 * i)}, {v(A + 2 * i + 1)}")
                k.I(f"s_add_u32 {s(S_T0)}, {s(S_OB)}, {(2 * ct * 64 + rt) * 2048}")
                k.I(f"buffer_store_dwordx4 {v(T, 4)}, v1, {s(S_O, 4)}, {s(S_T0)} offen offset:{st * 512} {common.K1_STORE_MODS}")
                n += 1
    stamp_flush(k, 4, S_WS, S_WAVE, 0)
    k.I("s_endpgm")

    k.L("K1_EPI_H")
    V_MU = 16
    V_CSV = 20
    V_RO = 36
    V_C0 = 40
    T = V_T
    srd(k, S_O, S_WS, 2 << 20, HSF)
    k.I("s_barrier")
    k.I(f"""
    s_lshl_b32 {s(S_T0)}, {s(S_WR)}, 6
    v_add_u32 {v(T)}, {s(S_T0)}, {v(V_L31)}
    v_lshlrev_b32 {v(T + 1)}, 3, {v(T)}
    v_add_u32 {v(T + 1)}, {L_STAT}, {v(T + 1)}
    ds_read_b64 {v(V_MU, 2)}, {v(T + 1)}
    ds_read_b64 {v(V_MU + 2, 2)}, {v(T + 1)} offset:256
    s_lshl_b32 {s(S_T1)}, {s(S_WC)}, 8
    s_add_u32 {s(S_T1)}, {s(S_T1)}, {L_CSUM}
    v_lshlrev_b32 {v(T + 2)}, 4, {v(V_H)}
    v_add_u32 {v(T + 2)}, {s(S_T1)}, {v(T + 2)}
    v_mov_b32 {v(V_C0)}, {hx(f2u(GELU_C0))}
    v_mov_b32 {v(V_C0 + 1)}, {hx(f2u(GELU_C0))}
    s_mov_b32 {s(S_C1)}, {hx(f2u(GELU_C1))}
    s_mov_b32 {s(S_C1 + 1)}, {hx(f2u(GELU_C1))}
    """)
    k.I(f"""
    s_sub_u32 {s(S_T1)}, {s(S_CB)}, 12
    s_lshr_b32 {s(S_T2)}, {s(S_T1)}, 1
    s_add_u32 {s(S_T2)}, {s(S_T2)}, 1
    s_sub_u32 {s(S_T0)}, 0, {s(S_T2)}
    s_bitcmp1_b32 {s(S_T1)}, 0
    s_cselect_b32 {s(S_T2)}, {s(S_T0)}, {s(S_T2)}
    s_lshl_b32 {s(S_T0)}, {s(S_RB)}, 7
    s_add_u32 {s(S_T0)}, {s(S_T0)}, {s(S_T2)}
    s_lshl_b32 {s(S_T1)}, {s(S_T1)}, 3
    s_lshl_b32 {s(S_T2)}, {s(S_WC)}, 2
    s_add_u32 {s(S_T1)}, {s(S_T1)}, {s(S_T2)}
    s_lshl_b32 {s(S_OB)}, {s(S_T1)}, 10
    v_add_u32 {v(T)}, {s(S_T0)}, {v(T)}
    """)
    S_ZM = 54
    for rt in range(2):
        r = T + 3
        k.I(f"""
        v_add_u32 {v(r)}, {32 * rt}, {v(T)}
        v_cmp_gt_u32 vcc, 0x800, {v(r)}
        s_mov_b64 {s(S_ZM + 2 * rt, 2)}, vcc
        v_and_b32 {v(r)}, 0x7ff, {v(r)}
        v_lshrrev_b32 {v(r + 1)}, 5, {v(r)}
        v_lshlrev_b32 {v(r + 1)}, 15, {v(r + 1)}
        v_and_b32 {v(r)}, 31, {v(r)}
        v_lshl_add_u32 {v(r)}, {v(V_H)}, 5, {v(r)}
        v_lshl_add_u32 {v(V_RO + rt)}, {v(r)}, 4, {v(r + 1)}
        """)
    n = 0
    for ct in range(2):
        for q in range(4):
            k.I(f"ds_read_b128 {v(V_CSV + 4 * q, 4)}, {v(T + 2)} offset:{ct * 128 + q * 32}")
        k.I("s_waitcnt lgkmcnt(0)")
        for rt in range(2):
            A = acc(ct, rt)
            mu = V_MU + 2 * rt
            for i in range(8):
                k.I(f"v_pk_fma_f32 {v(A + 2 * i, 2)}, {v(mu, 2)}, {v(V_CSV + 2 * i, 2)}, {v(A + 2 * i, 2)} op_sel_hi:[0,1,1] neg_lo:[1,0,0] neg_hi:[1,0,0]")
            for i in range(8):
                k.I(f"v_pk_mul_f32 {v(A + 2 * i, 2)}, {v(A + 2 * i, 2)}, {v(mu, 2)} op_sel:[0,1] op_sel_hi:[1,1]")
            gelu_pairs(k, [A + 2 * i for i in range(8)], V_T + 8, V_C0, S_C1)
            for hf in range(2):
                TT = V_T + 24 + 4 * (n & 1)
                for i in range(4):
                    k.I(f"v_cvt_pk_bf16_f32 {v(TT + i)}, {v(A + 8 * hf + 2 * i)}, {v(A + 8 * hf + 2 * i + 1)}")
                for i in range(4):
                    k.I(f"v_cndmask_b32 {v(TT + i)}, 0, {v(TT + i)}, {s(S_ZM + 2 * rt, 2)}")
                k.I(f"s_add_u32 {s(S_T0)}, {s(S_OB)}, {(2 * ct + hf) * 1024}")
                k.I(f"buffer_store_dwordx4 {v(TT, 4)}, {v(V_RO + rt)}, {s(S_O, 4)}, {s(S_T0)} offen {common.K1_STORE_MODS}")
                n += 1
    stamp_flush(k, 4, S_WS, S_WAVE, 0)
    k.I("s_endpgm")


def stats_wave(k):
    k.L("K1_STATS")
    k.I(f"""
    s_cmp_lg_u32 s2, 0
    s_cbranch_scc1 K1_NOZERO
    s_cmp_lg_u32 {s(S_WAVE)}, 8
    s_cbranch_scc1 K1_NOZERO
    """)
    srd(k, S_GO, S_WS, NFLAGS * 128, FLAGS)
    k.I(f"""
    v_lshlrev_b32 v1, 7, v0
    v_mov_b32 v2, 0
    buffer_store_dword v2, v1, {s(S_GO, 4)}, 0 offen sc1
    v_add_u32 v1, 8192, v1
    buffer_store_dword v2, v1, {s(S_GO, 4)}, 0 offen sc1
    """)
    k.L("K1_NOZERO")
    k.I(f"""
    s_cmp_eq_u32 {s(S_TYPE)}, 3
    s_cbranch_scc0 K1_END
    s_sub_u32 {s(S_LW)}, {s(S_WAVE)}, 8
    s_lshl_b32 {s(S_T1)}, {s(S_LW)}, 5
    """)
    AX, AW = 8, 16
    FX, FW, FG = 20, 28, 36
    SX, SQ, GD, CS, ONES = 44, 45, 46, 47, 48
    V_GA = 49
    frag_addr_setup(k, S_T1, [S_LW], AX, AW)
    k.I(f"""
    v_mov_b32 {v(SX)}, 0
    v_mov_b32 {v(SQ)}, 0
    v_mov_b32 {v(GD)}, 0
    v_mov_b32 {v(CS)}, 0
    v_mov_b32 {v(ONES)}, 0x3f803f80
    v_lshlrev_b32 {v(V_GA)}, 4, {v(V_H)}
    v_add_u32 {v(V_GA)}, {L_GATE}, {v(V_GA)}
    """)

    def sreads(j):
        st, sidx = j // 4, j % 4
        slot = st % 4
        hi = slot // 2
        so = (slot % 2) * SLOT
        b = j & 1
        k.I(f"ds_read_b128 {v(FX + 4 * b, 4)}, {v(AX + 4 * hi + sidx)} offset:{so}")
        k.I(f"ds_read_b64_tr_b16 {v(FW + 4 * b, 2)}, {v(AW + hi)} offset:{so + sidx * 4096}")
        k.I(f"ds_read_b64_tr_b16 {v(FW + 4 * b + 2, 2)}, {v(AW + hi)} offset:{so + sidx * 4096 + 1024}")
        k.I(f"ds_read_b128 {v(FG + 4 * b, 4)}, {v(V_GA)} offset:{j * 32}")

    for st in range(8):
        k.I("s_barrier")
        sreads(4 * st)
        for sidx in range(4):
            j = 4 * st + sidx
            b = j & 1
            if sidx < 3:
                sreads(j + 1)
                k.I("s_waitcnt lgkmcnt(4)")
            else:
                k.I("s_waitcnt lgkmcnt(0)")
            for i in range(4):
                k.I(f"v_dot2c_f32_bf16 {v(SX)}, {v(FX + 4 * b + i)}, {v(ONES)}")
                k.I(f"v_dot2c_f32_bf16 {v(SQ)}, {v(FX + 4 * b + i)}, {v(FX + 4 * b + i)}")
                k.I(f"v_dot2c_f32_bf16 {v(GD)}, {v(FX + 4 * b + i)}, {v(FG + 4 * b + i)}")
                k.I(f"v_dot2c_f32_bf16 {v(CS)}, {v(FW + 4 * b + i)}, {v(ONES)}")
    k.nop(3)
    T = 52
    for r in (SX, SQ, GD, CS):
        sum_halves(k, r, T)
    srd(k, S_GO, S_WS, 8192, GOFF)
    k.I(f"""
    v_mul_f32 {v(SX)}, {hx(f2u(1.0 / 512))}, {v(SX)}
    v_mul_f32 {v(SQ)}, {hx(f2u(1.0 / 512))}, {v(SQ)}
    v_fma_f32 {v(SQ)}, -{v(SX)}, {v(SX)}, {v(SQ)}
    v_max_f32 {v(SQ)}, 0, {v(SQ)}
    v_add_f32 {v(SQ)}, {hx(f2u(1e-5))}, {v(SQ)}
    v_rsq_f32 {v(SQ)}, {v(SQ)}
    v_mul_f32 {v(GD)}, {hx(f2u(-LOG2E))}, {v(GD)}
    v_exp_f32 {v(GD)}, {v(GD)}
    s_lshl_b32 {s(S_T1)}, {s(S_LW)}, 5
    v_add_u32 {v(T)}, {s(S_T1)}, {v(V_L31)}
    v_add_f32 {v(GD)}, 1.0, {v(GD)}
    v_rcp_f32 {v(GD)}, {v(GD)}
    v_lshlrev_b32 {v(T + 1)}, 3, {v(T)}
    v_lshlrev_b32 {v(T + 2)}, 2, {v(T)}
    v_add_u32 {v(T + 1)}, {L_STAT}, {v(T + 1)}
    v_add_u32 {v(T + 3)}, {L_CSUM}, {v(T + 2)}
    s_lshl_b32 {s(S_T0)}, {s(S_RB)}, 9
    s_mov_b32 exec_hi, 0
    ds_write_b64 {v(T + 1)}, {v(SX, 2)}
    ds_write_b32 {v(T + 3)}, {v(CS)}
    buffer_store_dword {v(GD)}, {v(T + 2)}, {s(S_GO, 4)}, {s(S_T0)} offen
    s_mov_b64 exec, -1
    s_waitcnt lgkmcnt(0)
    s_barrier
    s_endpgm
    """)


def loader(k):
    V_VX, V_VW = 4, 5
    k.L("K1_LOADER")
    k.I(f"""
    s_sub_u32 {s(S_LW)}, {s(S_WAVE)}, 4
    s_lshl_b32 {s(S_LDSW)}, {s(S_LW)}, 10
    s_lshl_b32 {s(S_XB)}, {s(S_RB)}, 17
    v_lshrrev_b32 v1, 3, v0
    v_lshlrev_b32 {v(V_VX)}, 10, v1
    v_lshrrev_b32 v1, 4, v0
    s_and_b32 {s(S_T0)}, {s(S_LW)}, 1
    s_lshl_b32 {s(S_T0)}, {s(S_T0)}, 2
    v_add_u32 v2, {s(S_T0)}, v1
    v_and_b32 v3, 7, v0
    v_xor_b32 v2, v2, v3
    v_lshl_add_u32 {v(V_VX)}, v2, 4, {v(V_VX)}
    s_lshl_b32 {s(S_T0)}, {s(S_LW)}, 13
    v_add_u32 {v(V_VX)}, {s(S_T0)}, {v(V_VX)}
    v_mul_lo_u32 {v(V_VW)}, v1, {s(S_RS)}
    v_lshlrev_b32 v2, 2, v1
    v_and_b32 v3, 15, v0
    v_xor_b32 v2, v2, v3
    v_lshl_add_u32 {v(V_VW)}, v2, 4, {v(V_VW)}
    s_mul_i32 {s(S_T0)}, {s(S_LW)}, {s(S_RS)}
    s_lshl_b32 {s(S_T0)}, {s(S_T0)}, 2
    v_add_u32 {v(V_VW)}, {s(S_T0)}, {v(V_VW)}
    """)

    def issue(st):
        slot = (st % 4) * SLOT
        for m in range(4):
            k.I(f"""
            s_add_u32 m0, {s(S_LDSW)}, {slot + m * 4096}
            s_add_u32 {s(S_T0)}, {s(S_XB)}, {m * 32768 + st * 128}
            buffer_load_dwordx4 {v(V_VX)}, {s(S_X, 4)}, {s(S_T0)} offen lds
            s_add_u32 m0, {s(S_LDSW)}, {slot + 16384 + m * 4096}
            s_nop 0
            buffer_load_dwordx4 {v(V_VW)}, {s(S_W, 4)}, {s(S_WCUR)} offen lds
            s_add_u32 {s(S_WCUR)}, {s(S_WCUR)}, {s(S_RS16)}
            """)

    def loader_loop(work):
        issue(0)
        issue(1)
        stamp(k, 1)
        issued = 1
        for st in range(8):
            k.I(f"s_waitcnt vmcnt({8 * (issued - st)})")
            if st == 0: stamp(k, 2)
            if st == 4: stamp(k, 3)
            k.I("s_barrier")
            if st == 0:
                issue(2)
                issue(3)
                issued = 3
            elif st + 3 <= 7:
                issue(st + 3)
                issued = st + 3
            work(st)

    k.I(f"""
    s_cmp_eq_u32 {s(S_TYPE)}, 3
    s_cbranch_scc1 K1_LOADER_H
    """)
    CSB = 8
    S_JOB = S_OB
    k.I(f"""
    s_sub_u32 {s(S_JOB)}, s2, 64
    s_cmp_eq_u32 {s(S_LW)}, 0
    s_cselect_b32 {s(S_JOB)}, {s(S_JOB)}, 99
    s_cmp_ge_u32 {s(S_JOB)}, 43
    s_cbranch_scc1 K1_NOCS_A
    s_load_dwordx2 {s(S_GP, 2)}, s[0:1], {KA_W3}
    v_lshrrev_b32 v1, 2, v0
    s_mov_b32 {s(S_T0)}, 2752
    v_mul_lo_u32 v1, v1, {s(S_T0)}
    v_and_b32 v2, 3, v0
    v_lshl_add_u32 v1, v2, 4, v1
    s_lshl_b32 {s(S_T1)}, {s(S_JOB)}, 6
    s_waitcnt lgkmcnt(0)
    """)
    srd(k, S_GW, S_GP, 512 * 1376 * 2)
    for i in range(32):
        k.I(f"buffer_load_dwordx4 {v(CSB + 4 * i, 4)}, v1, {s(S_GW, 4)}, {s(S_T1)} offen")
        k.I(f"s_add_u32 {s(S_T1)}, {s(S_T1)}, {16 * 2752}")
    k.L("K1_NOCS_A")
    loader_loop(lambda st: None)
    k.I(f"""
    s_cmp_ge_u32 {s(S_JOB)}, 43
    s_cbranch_scc1 K1_NOCS_B
    """)
    ACC = 136
    k.I("v_mov_b32 v2, 0x00003f80")
    k.I("v_mov_b32 v3, 0x3f800000")
    for i in range(8):
        k.I(f"v_mov_b32 {v(ACC + i)}, 0")
    for i in range(32):
        for d in range(4):
            k.I(f"v_dot2c_f32_bf16 {v(ACC + 2 * d)}, {v(CSB + 4 * i + d)}, v2")
            k.I(f"v_dot2c_f32_bf16 {v(ACC + 2 * d + 1)}, {v(CSB + 4 * i + d)}, v3")
    k.nop(3)
    for rot in (4, 8):
        for i in range(8):
            k.I(f"v_add_f32_dpp {v(ACC + i)}, {v(ACC + i)}, {v(ACC + i)} row_ror:{rot} row_mask:0xf bank_mask:0xf")
        k.nop(2)
    for i in range(8):
        k.I(f"v_mov_b32 {v(CSB + i)}, {v(ACC + i)}")
    k.nop(2)
    for i in range(8):
        k.I(f"v_permlane16_swap_b32 {v(CSB + i)}, {v(ACC + i)}")
    for i in range(8):
        k.I(f"v_add_f32 {v(ACC + i)}, {v(ACC + i)}, {v(CSB + i)}")
    for i in range(8):
        k.I(f"v_mov_b32 {v(CSB + i)}, {v(ACC + i)}")
    k.nop(2)
    for i in range(8):
        k.I(f"v_permlane32_swap_b32 {v(CSB + i)}, {v(ACC + i)}")
    for i in range(8):
        k.I(f"v_add_f32 {v(ACC + i)}, {v(ACC + i)}, {v(CSB + i)}")
    srd(k, S_GO, S_WS, 1376 * 4, CS3)
    k.I(f"""
    v_lshlrev_b32 v1, 5, v0
    s_lshl_b32 {s(S_T0)}, {s(S_JOB)}, 7
    s_mov_b64 exec, 15
    buffer_store_dwordx4 {v(ACC, 4)}, v1, {s(S_GO, 4)}, {s(S_T0)} offen
    buffer_store_dwordx4 {v(ACC + 4, 4)}, v1, {s(S_GO, 4)}, {s(S_T0)} offen offset:16
    s_mov_b64 exec, -1
    """)
    k.L("K1_NOCS_B")
    stamp_flush(k, 4, S_WS, S_WAVE, 0)
    k.I("s_endpgm")

    k.L("K1_LOADER_H")
    srd(k, S_GW, S_GP, 1024)
    k.I(f"""
    v_lshlrev_b32 v1, 4, v0
    s_mov_b32 m0, {L_GATE}
    s_nop 0
    buffer_load_dwordx4 v1, {s(S_GW, 4)}, 0 offen lds
    """)
    loader_loop(lambda st: None)
    k.I("s_barrier")
    stamp_flush(k, 4, S_WS, S_WAVE, 0)
    k.I("s_endpgm")


VGPRS = 168
BLOCK = 768

if __name__ == "__main__":
    k = gen()
    errs = check_kernel(k.text(), NAME, takes=[{}, {"K1_DEC_H": True, "K1_HTYPE": True}, {"K1_EPI_K": True}, {"K1_VTYPE": True},
                                               {"K1_LOADER": True}, {"K1_LOADER": True, "K1_LOADER_H": True}])
    for e in errs:
        print(e)
    print(len(k.lines), "lines", len(errs), "errors")
```

```python
from common import *
import common
import attn, roleb

NAME = "k2_kernel"
BLOCK = 256
LDS_BYTES = 81920
VGPRS = 256


def gen():
    k = Asm()
    kernel_header(k, NAME)
    k.I("""
    s_cmp_ge_u32 s2, 512
    s_cbranch_scc1 K2_END
    s_cmp_ge_u32 s2, 256
    s_cbranch_scc1 K2_B
    """)
    if common.A_PRIO:
        k.I(f"s_setprio {common.A_PRIO}")
    attn.gen_role(k)
    signal(k, attn.S_WS, attn.S_JB, F_O, attn.S_WAVE, attn.S_EX, attn.V_T)
    stamp_flush(k, 10, attn.S_WS, attn.S_WAVE, 1)
    k.I("s_endpgm")
    attn.gen_slow(k)
    B = roleb
    k.L("K2_B")
    k.I("s_sub_u32 s2, s2, 256")
    k.I(f"s_setprio {common.B_PRIO}")
    B.prologue(k)
    stamp(k, 0)
    if "noB" in common.K2X:
        k.I("s_endpgm")
    if "pollB" in common.K2X:
        k.I(f"s_lshr_b32 {s(B.S_N)}, {s(B.S_G)}, 2")
        wait_flag(k, B.S_WS, B.S_N, F_O, 32, B.S_WAVE, B.S_EX, B.V_T + 8)
        k.I("s_endpgm")
    if "barB" in common.K2X:
        lab = k.uid("SL")
        k.I(f"s_cmp_lg_u32 {s(B.S_WAVE)}, 0")
        k.I(f"s_cbranch_scc1 {lab}_d")
        k.I("s_mov_b32 s90, 400")
        k.L(lab)
        k.I("s_sleep 2")
        k.I("s_sub_u32 s90, s90, 1")
        k.I("s_cmp_lg_u32 s90, 0")
        k.I(f"s_cbranch_scc1 {lab}")
        k.L(lab + "_d")
        k.I("s_barrier")
        k.I("s_endpgm")
    B.stage_w2(k)
    stamp(k, 1)
    signal(k, B.S_WS, B.S_G, F_X1, B.S_WAVE, B.S_EX, B.V_T)
    B.stage_f(k, pre_wait=lambda kk: (wait_flag(kk, B.S_WS, B.S_G, F_X1, 8, B.S_WAVE, B.S_EX, B.V_T + 8), stamp(kk, 2)), act_mods="sc1")
    stamp(k, 5)
    signal(k, B.S_WS, B.S_G, F_PT, B.S_WAVE, B.S_EX, B.V_T)
    B.s64_weights(k, B.S_PWO)

    def part_wait(kk):
        wait_flag(kk, B.S_WS, B.S_G, F_PT, 8, B.S_WAVE, B.S_EX, B.V_T + 8)
        stamp(kk, 6)

    def o_wait(kk):
        kk.I(f"s_lshr_b32 {s(B.S_N)}, {s(B.S_G)}, 2")
        wait_flag(kk, B.S_WS, B.S_N, F_O, 32, B.S_WAVE, B.S_EX, B.V_T + 8)
        stamp(kk, 7)

    B.stage_o(k, part_wait=part_wait, mid_wait=o_wait, act_mods="sc1", part_mods="sc1")
    if common.PROF_ON:
        k.I("s_add_u32 s2, s2, 256")
    stamp_flush(k, 8, B.S_WS, B.S_WAVE, 1)
    k.L("K2_END")
    k.I("s_endpgm")
    X = common.K2X
    if X & {"nomfma", "nodma", "nods", "novalu"}:
        i0 = k.lines.index("K2_B:")
        out = k.lines[:i0]
        for ln in k.lines[i0:]:
            t = ln.strip()
            if "nomfma" in X and t.startswith("v_mfma"):
                continue
            if "nodma" in X and t.startswith("buffer_load") and t.endswith("lds"):
                continue
            if "nods" in X and t.startswith("ds_read"):
                continue
            if "novalu" in X and (t.startswith("v_pk_") or t.startswith("v_exp") or t.startswith("v_rcp") or t.startswith("v_cvt_pk")):
                continue
            out.append(ln)
        k.lines = out
    return k
```

```python
from common import *
import common

BLOCK = 256
INNER_STAMPS = True


def prio_loop(k):
    if common.B_LOOP_PRIO is not None:
        k.I(f"s_setprio {common.B_LOOP_PRIO}")


def prio_valu(k):
    if common.B_LOOP_PRIO is not None:
        k.I(f"s_setprio {common.B_PRIO}")


def fstamp(k, i):
    if not INNER_STAMPS:
        stamp(k, i)


def istamp(k, i):
    if INNER_STAMPS:
        stamp(k, i)


LDS_BYTES = 81920

S_A, S_W, S_O, S_X, S_U = 8, 12, 16, 20, 24
S_WS = 28
S_G, S_C, S_WAVE = 30, 31, 32
S_RT, S_KH = 33, 34
S_T0, S_T1, S_T2, S_T3 = 35, 36, 37, 38
S_PX, S_PW2, S_PW3, S_PW4, S_PWO, S_POUT = 40, 42, 44, 46, 48, 50
S_C1 = 52
S_N, S_T0F = 54, 55
S_LW = 56
S_WCUR, S_ACUR = 57, 58
S_EX = 60

V_L16, V_L31, V_H = 1, 2, 3
V_T = 232
VGPRS = 256


def prologue(k):
    k.I(f"""
    s_load_dwordx2 {s(S_WS, 2)}, s[0:1], {KA_WS}
    s_load_dwordx2 {s(S_PX, 2)}, s[0:1], {KA_X}
    s_load_dwordx4 {s(S_PW2 + 2, 4)}, s[0:1], {KA_W3}
    s_load_dwordx2 {s(S_PW2, 2)}, s[0:1], {KA_W2}
    s_load_dwordx2 {s(S_PWO, 2)}, s[0:1], {KA_WO}
    s_load_dwordx2 {s(S_POUT, 2)}, s[0:1], {KA_OUT}
    v_lshrrev_b32 v1, 6, v0
    v_and_b32 v0, 63, v0
    s_and_b32 {s(S_T0)}, s2, 7
    v_readfirstlane_b32 {s(S_WAVE)}, v1
    s_lshl_b32 {s(S_T0)}, {s(S_T0)}, 2
    s_bfe_u32 {s(S_T1)}, s2, 0x20006
    s_add_u32 {s(S_G)}, {s(S_T0)}, {s(S_T1)}
    s_bfe_u32 {s(S_C)}, s2, 0x30003
    v_lshlrev_b32 {v(V_L16)}, 4, v0
    v_and_b32 {v(V_L31)}, 31, v0
    v_lshrrev_b32 {v(V_H)}, 5, v0
    s_lshr_b32 {s(S_RT)}, {s(S_WAVE)}, 1
    s_and_b32 {s(S_KH)}, {s(S_WAVE)}, 1
    s_waitcnt lgkmcnt(0)
    """)


V_F = 8
V_AW = 4
V_FW = 72
V_ACC = 88
V_VW = 6
V_RED = 7
V_E = 120
L_RED = 65536


def s64_weights(k, wptr):
    srd(k, S_W, wptr, 512 * 512 * 2)
    T = V_T
    k.I(f"""
    v_lshrrev_b32 {v(T)}, 3, v0
    v_lshlrev_b32 {v(V_VW)}, 10, {v(T)}
    v_bfe_u32 {v(T)}, v0, 4, 1
    v_lshlrev_b32 {v(T)}, 2, {v(T)}
    v_and_b32 {v(T + 1)}, 7, v0
    v_xor_b32 {v(T)}, {v(T)}, {v(T + 1)}
    v_lshl_add_u32 {v(V_VW)}, {v(T)}, 4, {v(V_VW)}
    s_lshl_b32 {s(S_T0)}, {s(S_WAVE)}, 13
    s_lshl_b32 {s(S_T1)}, {s(S_C)}, 7
    s_add_u32 {s(S_WCUR)}, {s(S_T0)}, {s(S_T1)}
    s_lshl_b32 {s(S_LW)}, {s(S_WAVE)}, 10
    """)
    for m in range(16):
        k.I(f"""
        s_add_u32 m0, {s(S_LW)}, {m * 4096}
        s_add_u32 {s(S_T0)}, {s(S_WCUR)}, {m * 32768}
        buffer_load_dwordx4 {v(V_VW)}, {s(S_W, 4)}, {s(S_T0)} offen lds
        """)


def s64_acts(k, region, mods=""):
    srd(k, S_A, S_WS, 2 << 20, region)
    k.I(f"""
    s_lshl_b32 {s(S_T0)}, {s(S_G)}, 1
    s_add_u32 {s(S_T0)}, {s(S_T0)}, {s(S_RT)}
    s_lshl_b32 {s(S_T0)}, {s(S_T0)}, 5
    s_lshl_b32 {s(S_T1)}, {s(S_KH)}, 4
    s_add_u32 {s(S_T0)}, {s(S_T0)}, {s(S_T1)}
    s_lshl_b32 {s(S_ACUR)}, {s(S_T0)}, 10
    """)
    for i in range(16):
        if i and i % 4 == 0:
            k.I(f"s_add_u32 {s(S_ACUR)}, {s(S_ACUR)}, 4096")
        k.I(f"buffer_load_dwordx4 {v(V_F + 4 * i, 4)}, {v(V_L16)}, {s(S_A, 4)}, {s(S_ACUR)} offen offset:{(i % 4) * 1024} {mods}")


def s64_addr(k):
    T = V_T
    k.I(f"""
    v_bfe_u32 {v(T)}, v0, 2, 2
    v_lshl_add_u32 {v(T + 1)}, {v(V_H)}, 2, {v(T)}
    v_lshlrev_b32 {v(T + 1)}, 7, {v(T + 1)}
    v_bfe_u32 {v(T + 2)}, v0, 4, 1
    v_lshl_add_u32 {v(T + 1)}, {v(T + 2)}, 5, {v(T + 1)}
    v_and_b32 {v(T + 2)}, 3, v0
    v_lshl_add_u32 {v(T + 1)}, {v(T + 2)}, 3, {v(T + 1)}
    s_lshl_b32 {s(S_T0)}, {s(S_KH)}, 15
    v_add_u32 {v(T + 1)}, {s(S_T0)}, {v(T + 1)}
    v_lshrrev_b32 {v(T)}, 1, {v(T)}
    v_lshl_add_u32 {v(V_AW)}, {v(T)}, 6, {v(T + 1)}
    v_xor_b32 {v(T)}, 1, {v(T)}
    v_lshl_add_u32 {v(V_AW + 1)}, {v(T)}, 6, {v(T + 1)}
    s_lshl_b32 {s(S_T0)}, {s(S_WAVE)}, 12
    s_add_u32 {s(S_T0)}, {s(S_T0)}, {L_RED}
    v_add_u32 {v(V_RED)}, {s(S_T0)}, {v(V_L16)}
    """)


def s64_main(k, act_wait):
    def reads(sx):
        b = sx & 1
        for ct in range(2):
            k.I(f"ds_read_b64_tr_b16 {v(V_FW + 8 * b + 4 * ct, 2)}, {v(V_AW + ct)} offset:{sx * 2048}")
            k.I(f"ds_read_b64_tr_b16 {v(V_FW + 8 * b + 4 * ct + 2, 2)}, {v(V_AW + ct)} offset:{sx * 2048 + 1024}")

    prio_loop(k)
    reads(0)
    for sx in range(16):
        b = sx & 1
        act_wait(sx)
        k.I("s_waitcnt lgkmcnt(0)")
        for ct in range(2):
            c = "0" if sx == 0 else v(V_ACC + 16 * ct, 16)
            k.I(f"v_mfma_f32_32x32x16_bf16 {v(V_ACC + 16 * ct, 16)}, {v(V_FW + 8 * b + 4 * ct, 4)}, {v(V_F + 4 * sx, 4)}, {c}")
            if ct == 0 and sx + 1 < 16:
                reads(sx + 1)
    prio_valu(k)
    istamp(k, 2)
    k.nop(12)
    lab = k.uid("B_RED")
    k.I(f"""
    s_cmp_eq_u32 {s(S_KH)}, 0
    s_cbranch_scc1 {lab}
    """)
    for i in range(16):
        k.I(f"v_swap_b32 {v(V_ACC + i)}, {v(V_ACC + 16 + i)}")
    k.L(lab)
    for q in range(4):
        k.I(f"ds_write_b128 {v(V_RED)}, {v(V_ACC + 16 + 4 * q, 4)} offset:{q * 1024}")
    k.I(f"""
    s_waitcnt lgkmcnt(0)
    s_barrier
    v_xor_b32 {v(V_RED)}, 0x1000, {v(V_RED)}
    """)
    for q in range(4):
        k.I(f"ds_read_b128 {v(V_ACC + 16 + 4 * q, 4)}, {v(V_RED)} offset:{q * 1024}")
    k.I("s_waitcnt lgkmcnt(0)")
    for i in range(8):
        k.I(f"v_pk_add_f32 {v(V_ACC + 2 * i, 2)}, {v(V_ACC + 2 * i, 2)}, {v(V_ACC + 16 + 2 * i, 2)}")


def unpack8(k, dst, src):
    for i in range(4):
        k.I(f"v_lshlrev_b32 {v(dst + 2 * i)}, 16, {v(src + i)}")
        k.I(f"v_and_b32 {v(dst + 2 * i + 1)}, 0xffff0000, {v(src + i)}")


def stage_w2(k, pre_signal=None):
    mods = common.B_STORE_MODS
    V_X = V_E
    V_XO = V_E + 8
    s64_weights(k, S_PW2)
    s64_acts(k, HSF)
    srd(k, S_X, S_PX, 2048 * 512 * 2)
    k.I(f"""
    s_lshl_b32 {s(S_T0)}, {s(S_G)}, 1
    s_add_u32 {s(S_T0)}, {s(S_T0)}, {s(S_RT)}
    s_lshl_b32 {s(S_T0)}, {s(S_T0)}, 15
    s_lshl_b32 {s(S_T1)}, {s(S_C)}, 7
    s_add_u32 {s(S_T0)}, {s(S_T0)}, {s(S_T1)}
    s_lshl_b32 {s(S_T1)}, {s(S_KH)}, 6
    s_add_u32 {s(S_T0)}, {s(S_T0)}, {s(S_T1)}
    v_lshlrev_b32 {v(V_XO)}, 10, {v(V_L31)}
    v_lshl_add_u32 {v(V_XO)}, {v(V_H)}, 3, {v(V_XO)}
    """)
    for i in range(4):
        k.I(f"buffer_load_dwordx2 {v(V_X + 2 * i, 2)}, {v(V_XO)}, {s(S_X, 4)}, {s(S_T0)} offen offset:{i * 16}")
    s64_addr(k)
    k.I("s_waitcnt vmcnt(20)")
    k.I("s_barrier")
    istamp(k, 1)
    s64_main(k, lambda i: k.I(f"s_waitcnt vmcnt({4 + 15 - i})"))
    k.I("s_waitcnt vmcnt(0)")
    X = V_F
    for hf in range(2):
        unpack8(k, X + 8 * hf, V_X + 4 * hf)
    for i in range(8):
        k.I(f"v_pk_add_f32 {v(V_ACC + 2 * i, 2)}, {v(V_ACC + 2 * i, 2)}, {v(X + 2 * i, 2)}")
    SX, SQ = V_T, V_T + 1
    k.I(f"v_add_f32 {v(SX)}, {v(V_ACC)}, {v(V_ACC + 1)}")
    k.I(f"v_mul_f32 {v(SQ)}, {v(V_ACC)}, {v(V_ACC)}")
    k.I(f"v_fmac_f32 {v(SQ)}, {v(V_ACC + 1)}, {v(V_ACC + 1)}")
    for i in range(2, 16):
        k.I(f"v_add_f32 {v(SX)}, {v(SX)}, {v(V_ACC + i)}")
        k.I(f"v_fmac_f32 {v(SQ)}, {v(V_ACC + i)}, {v(V_ACC + i)}")
    sum_halves(k, SX, V_T + 2)
    sum_halves(k, SQ, V_T + 2)
    srd(k, S_O, S_WS, 2 << 20, X1F)
    srd(k, S_U, S_WS, 2048 * 128, STOFF)
    k.I(f"""
    s_lshl_b32 {s(S_T0)}, {s(S_G)}, 1
    s_add_u32 {s(S_T0)}, {s(S_T0)}, {s(S_RT)}
    s_lshl_b32 {s(S_T2)}, {s(S_T0)}, 12
    s_lshl_b32 {s(S_T0)}, {s(S_T0)}, 5
    s_lshl_b32 {s(S_T1)}, {s(S_C)}, 2
    s_add_u32 {s(S_T0)}, {s(S_T0)}, {s(S_T1)}
    s_lshl_b32 {s(S_T1)}, {s(S_KH)}, 1
    s_add_u32 {s(S_T0)}, {s(S_T0)}, {s(S_T1)}
    s_lshl_b32 {s(S_T0)}, {s(S_T0)}, 10
    s_lshl_b32 {s(S_T1)}, {s(S_C)}, 4
    s_add_u32 {s(S_T2)}, {s(S_T2)}, {s(S_T1)}
    s_lshl_b32 {s(S_T1)}, {s(S_KH)}, 3
    s_add_u32 {s(S_T2)}, {s(S_T2)}, {s(S_T1)}
    v_lshlrev_b32 {v(V_T + 3)}, 7, {v(V_L31)}
    """)
    for hf in range(2):
        for i in range(4):
            k.I(f"v_cvt_pk_bf16_f32 {v(X + 4 * hf + i)}, {v(V_ACC + 8 * hf + 2 * i)}, {v(V_ACC + 8 * hf + 2 * i + 1)}")
        k.I(f"buffer_store_dwordx4 {v(X + 4 * hf, 4)}, {v(V_L16)}, {s(S_O, 4)}, {s(S_T0)} offen offset:{hf * 1024} {mods}")
    k.I(f"""
    s_mov_b32 exec_hi, 0
    buffer_store_dwordx2 {v(SX, 2)}, {v(V_T + 3)}, {s(S_U, 4)}, {s(S_T2)} offen {mods}
    s_mov_b64 exec, -1
    """)


def stage_o(k, part_wait=None, mid_wait=None, act_mods="", part_mods=""):
    V_PT = V_E
    V_X1 = V_E + 64
    V_G = V_E + 72
    V_OO = V_E + 73
    if part_wait:
        part_wait(k)
    srd(k, S_X, S_WS, 16 << 20, PART)
    srd(k, S_U, S_WS, 2 << 20, X1F)
    k.I(f"""
    s_lshl_b32 {s(S_T0)}, {s(S_G)}, 1
    s_add_u32 {s(S_T0)}, {s(S_T0)}, {s(S_RT)}
    s_lshl_b32 {s(S_T3)}, {s(S_T0)}, 5
    s_lshl_b32 {s(S_T0)}, {s(S_T0)}, 5
    s_lshl_b32 {s(S_T1)}, {s(S_C)}, 2
    s_add_u32 {s(S_T0)}, {s(S_T0)}, {s(S_T1)}
    s_lshl_b32 {s(S_T1)}, {s(S_KH)}, 1
    s_add_u32 {s(S_T0)}, {s(S_T0)}, {s(S_T1)}
    s_lshl_b32 {s(S_T0)}, {s(S_T0)}, 10
    """)
    for cp in range(8):
        for hf in range(2):
            k.I(f"buffer_load_dwordx4 {v(V_PT + 8 * cp + 4 * hf, 4)}, {v(V_L16)}, {s(S_X, 4)}, {s(S_T0)} offen offset:{hf * 1024} {part_mods}")
        if cp == 0:
            for hf in range(2):
                k.I(f"buffer_load_dwordx4 {v(V_X1 + 4 * hf, 4)}, {v(V_L16)}, {s(S_U, 4)}, {s(S_T0)} offen offset:{hf * 1024} {part_mods}")
        if cp < 7:
            k.I(f"s_add_u32 {s(S_T0)}, {s(S_T0)}, {2 << 20}")
    srd(k, S_U, S_WS, 8192, GOFF)
    k.I(f"""
    v_add_u32 {v(V_OO)}, {s(S_T3)}, {v(V_L31)}
    v_lshlrev_b32 {v(V_G)}, 2, {v(V_OO)}
    buffer_load_dword {v(V_G)}, {v(V_G)}, {s(S_U, 4)}, 0 offen
    """)
    s64_addr(k)
    if mid_wait:
        mid_wait(k)
    s64_acts(k, OF, act_mods)
    k.I("s_waitcnt vmcnt(16)")
    k.I("s_barrier")
    istamp(k, 1)
    B = V_T
    TMP = V_E + 76
    for hf in range(2):
        unpack8(k, B + 8 * hf, V_X1 + 4 * hf)
        for cp in range(8):
            unpack8(k, TMP, V_PT + 8 * cp + 4 * hf)
            for i in range(4):
                k.I(f"v_pk_add_f32 {v(B + 8 * hf + 2 * i, 2)}, {v(B + 8 * hf + 2 * i, 2)}, {v(TMP + 2 * i, 2)}")
    for i in range(16):
        k.I(f"v_mov_b32 {v(V_PT + i)}, {v(B + i)}")
    B = V_PT
    s64_main(k, lambda i: k.I(f"s_waitcnt vmcnt({15 - i})"))
    for i in range(8):
        k.I(f"v_pk_add_f32 {v(V_ACC + 2 * i, 2)}, {v(V_ACC + 2 * i, 2)}, {v(B + 2 * i, 2)} neg_lo:[0,1] neg_hi:[0,1]")
    for i in range(8):
        k.I(f"v_pk_fma_f32 {v(V_ACC + 2 * i, 2)}, {v(V_ACC + 2 * i, 2)}, {v(V_G, 2)}, {v(B + 2 * i, 2)} op_sel_hi:[1,0,1]")
    srd(k, S_O, S_POUT, 2048 * 512 * 2)
    k.I(f"""
    v_lshlrev_b32 {v(V_OO)}, 10, {v(V_OO)}
    v_lshl_add_u32 {v(V_OO)}, {v(V_H)}, 4, {v(V_OO)}
    s_lshl_b32 {s(S_T0)}, {s(S_C)}, 7
    s_lshl_b32 {s(S_T1)}, {s(S_KH)}, 6
    s_add_u32 {s(S_T0)}, {s(S_T0)}, {s(S_T1)}
    """)
    X = V_F
    for hf in range(2):
        for i in range(4):
            k.I(f"v_cvt_pk_bf16_f32 {v(X + 4 * hf + i)}, {v(V_ACC + 8 * hf + 2 * i)}, {v(V_ACC + 8 * hf + 2 * i + 1)}")
    k.nop(2)
    for hf in range(2):
        k.I(f"v_permlane32_swap_b32 {v(X + 4 * hf)}, {v(X + 4 * hf + 2)}")
        k.I(f"v_permlane32_swap_b32 {v(X + 4 * hf + 1)}, {v(X + 4 * hf + 3)}")
    for hf in range(2):
        k.I(f"buffer_store_dwordx4 {v(X + 4 * hf, 4)}, {v(V_OO)}, {s(S_O, 4)}, {s(S_T0)} offen offset:{hf * 32}")


F_SLOT = 16384
L_HID = 0
R2, R3, R1 = 24576, 40960, 65536
W4_SLOT = [R1, R2, R3]
V3_ACC = 8
V3_FA = 56
V3_FW = 72
V3_AA = 88
V3_AW = 90
V3_VW = 92
V3_HA = 93
V3_CS = 96
V3_ST = 128
V3_MU = 160
V3_C0 = 164
V3_G = 168
V4_ACC = 8
V4_FH = 136
V4_FW = 152
V4_AH = 192
V4_AW = 193
V4_VW = 197
V4_T = 200
S_W3O = (62, 63, 64)
S_W4B = 65


def stage_f(k, pre_wait=None, act_mods=""):
    T = V_T
    mods = common.B_STORE_MODS
    k.I(f"""
    s_mul_i32 {s(S_T0F)}, {s(S_C)}, 6
    s_mul_i32 {s(S_T0)}, {s(S_C)}, 5
    s_add_u32 {s(S_T0)}, {s(S_T0)}, 3
    s_cmp_lt_u32 {s(S_C)}, 3
    s_cselect_b32 {s(S_T0F)}, {s(S_T0F)}, {s(S_T0)}
    s_cselect_b32 {s(S_N)}, 6, 5
    """)
    srd(k, S_W, S_PW3, 512 * 1376 * 2)
    srd(k, S_A, S_WS, 2 << 20, X1F)
    k.I(f"""
    v_lshrrev_b32 {v(T)}, 2, v0
    s_lshl_b32 {s(S_T0)}, {s(S_KH)}, 4
    v_add_u32 {v(T)}, {s(S_T0)}, {v(T)}
    s_mov_b32 {s(S_T1)}, 2752
    v_mul_lo_u32 {v(V3_VW)}, {v(T)}, {s(S_T1)}
    v_and_b32 {v(T)}, 3, v0
    v_lshl_add_u32 {v(V3_VW)}, {v(T)}, 4, {v(V3_VW)}
    s_add_u32 {s(S_T0)}, {s(S_RT)}, {s(S_T0F)}
    s_lshl_b32 {s(S_W3O[0])}, {s(S_T0)}, 6
    s_add_u32 {s(S_W3O[1])}, {s(S_W3O[0])}, 128
    s_add_u32 {s(S_W3O[2])}, {s(S_W3O[0])}, 256
    s_add_u32 {s(S_T0)}, {s(S_T0F)}, {s(S_N)}
    s_sub_u32 {s(S_T0)}, {s(S_T0)}, 1
    s_lshl_b32 {s(S_T0)}, {s(S_T0)}, 6
    s_min_u32 {s(S_W3O[2])}, {s(S_W3O[2])}, {s(S_T0)}
    s_lshl_b32 {s(S_T0)}, {s(S_G)}, 1
    s_add_u32 {s(S_T0)}, {s(S_T0)}, {s(S_RT)}
    s_lshl_b32 {s(S_T0)}, {s(S_T0)}, 5
    s_add_u32 {s(S_T0)}, {s(S_T0)}, {s(S_KH)}
    s_lshl_b32 {s(S_ACUR)}, {s(S_T0)}, 10
    s_lshl_b32 {s(S_LW)}, {s(S_WAVE)}, 10
    """)

    def wload(st):
        slot = (st % 4) * F_SLOT
        for m in range(3):
            k.I(f"""
            s_add_u32 m0, {s(S_LW)}, {slot + 4096 + m * 4096}
            s_add_u32 {s(S_T0)}, {s(S_W3O[m])}, {st * 32 * 2752}
            buffer_load_dwordx4 {v(V3_VW)}, {s(S_W, 4)}, {s(S_T0)} offen lds
            """)

    def aload(st):
        slot = (st % 4) * F_SLOT
        k.I(f"""
        s_add_u32 m0, {s(S_LW)}, {slot}
        s_add_u32 {s(S_T0)}, {s(S_ACUR)}, {st * 2048}
        buffer_load_dwordx4 {v(V_L16)}, {s(S_A, 4)}, {s(S_T0)} offen {act_mods} lds
        """)

    for st in range(4):
        wload(st)
    srd(k, S_U, S_WS, 1376 * 4, CS3)
    k.I(f"""
    s_add_u32 {s(S_T0)}, {s(S_T0F)}, {s(S_WAVE)}
    s_lshl_b32 {s(S_T0)}, {s(S_T0)}, 7
    s_add_u32 {s(S_T1)}, {s(S_RT)}, {s(S_T0F)}
    s_add_u32 {s(S_T1)}, {s(S_T1)}, 4
    s_lshl_b32 {s(S_T1)}, {s(S_T1)}, 7
    v_lshlrev_b32 {v(T)}, 4, {v(V_H)}
    """)
    for q in range(4):
        k.I(f"buffer_load_dwordx4 {v(V3_CS + 4 * q, 4)}, {v(T)}, {s(S_U, 4)}, {s(S_T0)} offen offset:{q * 32}")
    for q in range(4):
        k.I(f"buffer_load_dwordx4 {v(V3_CS + 16 + 4 * q, 4)}, {v(T)}, {s(S_U, 4)}, {s(S_T1)} offen offset:{q * 32}")
    k.I(f"""
    s_lshl_b32 {s(S_T0)}, {s(S_KH)}, 11
    v_add_u32 {v(V3_AA)}, {s(S_T0)}, {v(V_L16)}
    v_xor_b32 {v(V3_AA + 1)}, 0x800, {v(V3_AA)}
    v_bfe_u32 {v(T + 1)}, v0, 2, 2
    v_lshl_add_u32 {v(T + 1)}, {v(V_H)}, 2, {v(T + 1)}
    v_lshlrev_b32 {v(T + 1)}, 6, {v(T + 1)}
    v_bfe_u32 {v(T + 2)}, v0, 4, 1
    v_lshl_add_u32 {v(T + 1)}, {v(T + 2)}, 5, {v(T + 1)}
    v_and_b32 {v(T + 2)}, 3, v0
    v_lshl_add_u32 {v(T + 1)}, {v(T + 2)}, 3, {v(T + 1)}
    s_lshl_b32 {s(S_T0)}, {s(S_WAVE)}, 11
    s_add_u32 {s(S_T0)}, {s(S_T0)}, 4096
    v_add_u32 {v(V3_AW)}, {s(S_T0)}, {v(T + 1)}
    s_add_u32 {s(S_T0)}, {s(S_RT)}, 4
    s_lshl_b32 {s(S_T0)}, {s(S_T0)}, 11
    s_add_u32 {s(S_T0)}, {s(S_T0)}, 4096
    v_add_u32 {v(V3_AW + 1)}, {s(S_T0)}, {v(T + 1)}
    """)
    srd(k, S_O, S_PW4, 1376 * 512 * 2)
    k.I(f"""
    v_lshrrev_b32 {v(T)}, 4, v0
    v_lshlrev_b32 {v(V4_VW)}, 10, {v(T)}
    v_lshlrev_b32 {v(T)}, 2, {v(T)}
    v_and_b32 {v(T + 1)}, 15, v0
    v_xor_b32 {v(T)}, {v(T)}, {v(T + 1)}
    v_lshl_add_u32 {v(V4_VW)}, {v(T)}, 4, {v(V4_VW)}
    s_lshl_b32 {s(S_W4B)}, {s(S_T0F)}, 15
    s_lshl_b32 {s(S_T0)}, {s(S_WAVE)}, 8
    s_add_u32 {s(S_W4B)}, {s(S_W4B)}, {s(S_T0)}
    s_lshl_b32 {s(S_T3)}, {s(S_WAVE)}, 12
    """)

    def w4load(j):
        for m in range(4):
            k.I(f"""
            s_add_u32 m0, {s(S_T3)}, {W4_SLOT[j % 3] + m * 1024}
            s_add_u32 {s(S_T0)}, {s(S_W4B)}, {(16 * j + 4 * m) * 1024}
            buffer_load_dwordx4 {v(V4_VW)}, {s(S_O, 4)}, {s(S_T0)} offen lds
            """)

    if pre_wait:
        pre_wait(k)
    for st in range(4):
        aload(st)
    srd(k, S_X, S_WS, 2048 * 128, STOFF)
    k.I(f"""
    s_lshl_b32 {s(S_T0)}, {s(S_G)}, 13
    s_lshl_b32 {s(S_T1)}, {s(S_KH)}, 12
    s_add_u32 {s(S_T1)}, {s(S_T1)}, {s(S_T0)}
    s_xor_b32 {s(S_T2)}, {s(S_T1)}, 0x1000
    v_lshlrev_b32 {v(T)}, 7, {v(V_L31)}
    v_lshl_add_u32 {v(T)}, {v(V_H)}, 6, {v(T)}
    """)
    for rr, so in ((0, S_T1), (1, S_T2)):
        for q in range(4):
            k.I(f"buffer_load_dwordx4 {v(V3_ST + 16 * rr + 4 * q, 4)}, {v(T)}, {s(S_X, 4)}, {s(so)} offen offset:{q * 16} {act_mods}")

    def reads(j):
        st, sx = j >> 1, j & 1
        slot = (st % 4) * F_SLOT
        b = j & 1
        g1 = [f"ds_read_b64_tr_b16 {v(V3_FW + 8 * b, 2)}, {v(V3_AW)} offset:{slot + sx * 1024}",
              f"ds_read_b64_tr_b16 {v(V3_FW + 8 * b + 2, 2)}, {v(V3_AW)} offset:{slot + sx * 1024 + 512}",
              f"ds_read_b128 {v(V3_FA + 8 * b, 4)}, {v(V3_AA)} offset:{slot + sx * 1024}"]
        g2 = [f"ds_read_b128 {v(V3_FA + 8 * b + 4, 4)}, {v(V3_AA + 1)} offset:{slot + sx * 1024}",
              f"ds_read_b64_tr_b16 {v(V3_FW + 8 * b + 4, 2)}, {v(V3_AW + 1)} offset:{slot + sx * 1024}",
              f"ds_read_b64_tr_b16 {v(V3_FW + 8 * b + 6, 2)}, {v(V3_AW + 1)} offset:{slot + sx * 1024 + 512}"]
        return g1, g2

    def wait_for(st):
        if st < 4:
            later = (3 - st) + 8 + 4 * max(0, st - 1)
            return later
        return 4 * (min(15, st + 2) - st) + (4 if st >= 14 else 0)

    k.I(f"s_waitcnt vmcnt({wait_for(0)})")
    k.I("s_barrier")
    istamp(k, 1)
    prio_loop(k)
    g1, g2 = reads(0)
    for t in g1 + g2:
        k.I(t)
    for j in range(32):
        st, sx = j >> 1, j & 1
        b = j & 1

        def mf(i, fw, fa):
            c = "0" if j == 0 else v(V3_ACC + 16 * i, 16)
            k.I(f"v_mfma_f32_32x32x16_bf16 {v(V3_ACC + 16 * i, 16)}, {v(fw, 4)}, {v(fa, 4)}, {c}")

        k.I("s_waitcnt lgkmcnt(0)")
        mf(0, V3_FW + 8 * b, V3_FA + 8 * b)
        if sx == 1 and st < 15:
            k.I(f"s_waitcnt vmcnt({wait_for(st + 1)})")
            k.I("s_barrier")
        if j + 1 < 32:
            g1, g2 = reads(j + 1)
            for t in g1:
                k.I(t)
        mf(1, V3_FW + 8 * b, V3_FA + 8 * b + 4)
        if j + 1 < 32:
            for t in g2:
                k.I(t)
        mf(2, V3_FW + 8 * b + 4, V3_FA + 8 * b)
        if sx == 1 and st + 4 <= 15:
            wload(st + 4)
            aload(st + 4)
        if sx == 1 and st == 12:
            w4load(0)
    prio_valu(k)
    istamp(k, 2)
    fstamp(k, 3)
    w4load(1)
    for rr in range(2):
        B = V3_ST + 16 * rr
        for i in range(1, 8):
            k.I(f"v_pk_add_f32 {v(B, 2)}, {v(B, 2)}, {v(B + 2 * i, 2)}") if False else None
    k.I("s_waitcnt vmcnt(8)")
    for rr in range(2):
        B = V3_ST + 16 * rr
        for i in range(1, 8):
            k.I(f"v_pk_add_f32 {v(B, 2)}, {v(B, 2)}, {v(B + 2 * i, 2)}")
        sum_halves(k, B, T)
        sum_halves(k, B + 1, T)
        mu = V3_MU + 2 * rr
        k.I(f"""
        v_mul_f32 {v(mu)}, {hx(f2u(1.0 / 512))}, {v(B)}
        v_mul_f32 {v(mu + 1)}, {hx(f2u(1.0 / 512))}, {v(B + 1)}
        v_fma_f32 {v(mu + 1)}, -{v(mu)}, {v(mu)}, {v(mu + 1)}
        v_max_f32 {v(mu + 1)}, 0, {v(mu + 1)}
        v_add_f32 {v(mu + 1)}, {hx(f2u(1e-5))}, {v(mu + 1)}
        v_rsq_f32 {v(mu + 1)}, {v(mu + 1)}
        """)
    k.I(f"""
    s_mul_i32 {s(S_T0)}, {s(S_KH)}, 12288
    s_lshl_b32 {s(S_T1)}, {s(S_WAVE)}, 11
    s_add_u32 {s(S_T1)}, {s(S_T1)}, {s(S_T0)}
    v_add_u32 {v(V3_HA)}, {s(S_T1)}, {v(V_L16)}
    s_sub_u32 {s(S_T2)}, 12288, {s(S_T0)}
    s_lshl_b32 {s(S_T1)}, {s(S_WAVE)}, 11
    s_add_u32 {s(S_T1)}, {s(S_T1)}, {s(S_T2)}
    v_add_u32 {v(V3_HA + 1)}, {s(S_T1)}, {v(V_L16)}
    s_add_u32 {s(S_T1)}, {s(S_RT)}, 4
    s_lshl_b32 {s(S_T1)}, {s(S_T1)}, 11
    s_add_u32 {s(S_T1)}, {s(S_T1)}, {s(S_T0)}
    v_add_u32 {v(V3_HA + 2)}, {s(S_T1)}, {v(V_L16)}
    v_mov_b32 {v(V3_C0)}, {hx(f2u(GELU_C0))}
    v_mov_b32 {v(V3_C0 + 1)}, {hx(f2u(GELU_C0))}
    s_mov_b32 {s(S_C1)}, {hx(f2u(GELU_C1))}
    s_mov_b32 {s(S_C1 + 1)}, {hx(f2u(GELU_C1))}
    """)
    for i, (mu, cs) in enumerate(((V3_MU, V3_CS), (V3_MU + 2, V3_CS), (V3_MU, V3_CS + 16))):
        A = V3_ACC + 16 * i
        for q in range(8):
            k.I(f"v_pk_fma_f32 {v(A + 2 * q, 2)}, {v(mu, 2)}, {v(cs + 2 * q, 2)}, {v(A + 2 * q, 2)} op_sel_hi:[0,1,1] neg_lo:[1,0,0] neg_hi:[1,0,0]")
        for q in range(8):
            k.I(f"v_pk_mul_f32 {v(A + 2 * q, 2)}, {v(A + 2 * q, 2)}, {v(mu, 2)} op_sel:[0,1] op_sel_hi:[1,1]")
        gelu_pairs(k, [A + 2 * q for q in range(8)], V3_G, V3_C0, S_C1)
        for hf in range(2):
            P = V3_G + 16 + 4 * hf
            for q in range(4):
                k.I(f"v_cvt_pk_bf16_f32 {v(P + q)}, {v(A + 8 * hf + 2 * q)}, {v(A + 8 * hf + 2 * q + 1)}")
            k.I(f"ds_write_b128 {v(V3_HA + i)}, {v(P, 4)} offset:{L_HID + hf * 1024}")
    k.I(f"""
    v_bfe_u32 {v(T)}, v0, 2, 2
    v_lshl_add_u32 {v(T + 1)}, {v(V_H)}, 2, {v(T)}
    v_lshlrev_b32 {v(T + 1)}, 8, {v(T + 1)}
    v_bfe_u32 {v(T + 2)}, v0, 4, 1
    v_lshl_add_u32 {v(T + 1)}, {v(T + 2)}, 5, {v(T + 1)}
    v_and_b32 {v(T + 2)}, 3, v0
    v_lshl_add_u32 {v(T + 1)}, {v(T + 2)}, 3, {v(T + 1)}
    s_add_u32 {s(S_T0)}, {s(S_T3)}, {R2}
    v_add_u32 {v(T + 1)}, {s(S_T0)}, {v(T + 1)}
    """)
    for ct in range(4):
        k.I(f"v_xor_b32 {v(T + 2)}, {ct}, {v(T)}")
        k.I(f"v_lshl_add_u32 {v(V4_AW + ct)}, {v(T + 2)}, 6, {v(T + 1)}")
    k.I(f"""
    v_mov_b32 {v(V4_AH)}, {v(V_L16)}
    s_waitcnt lgkmcnt(0)
    s_barrier
    """)
    istamp(k, 3)
    fstamp(k, 4)
    w4load(2)

    def reads4(j):
        b = j & 1
        so = W4_SLOT[j % 3] - R2
        g = [[], []]
        for ct in range(4):
            for jr in range(2):
                g[ct >> 1].append(f"ds_read_b64_tr_b16 {v(V4_FW + 16 * b + 4 * ct + 2 * jr, 2)}, {v(V4_AW + ct)} offset:{so + jr * 2048}")
        h = [f"ds_read_b128 {v(V4_FH + 8 * b + 4 * rt, 4)}, {v(V4_AH)} offset:{L_HID + rt * 12288 + j * 1024}" for rt in range(2)]
        return h[0:1] + g[0][:2], h[1:2] + g[0][2:], g[1][:2], g[1][2:]

    prio_loop(k)
    k.I("s_waitcnt vmcnt(8)")
    for grp in reads4(0):
        for t in grp:
            k.I(t)
    lab_done = k.uid("B_W4DONE")
    for j in range(12):
        b = j & 1
        k.I("s_waitcnt lgkmcnt(0)")
        if j == 10:
            k.I(f"s_cmp_eq_u32 {s(S_N)}, 5")
            k.I(f"s_cbranch_scc1 {lab_done}")
        if j + 3 < 12:
            w4load(j + 3)
        grps = reads4(j + 1) if j + 1 < 12 else [[], [], [], []]
        n = 0
        for ct in range(4):
            for rt in range(2):
                A = V4_ACC + 32 * ct + 16 * rt
                c = "0" if j == 0 else v(A, 16)
                k.I(f"v_mfma_f32_32x32x16_bf16 {v(A, 16)}, {v(V4_FW + 16 * b + 4 * ct, 4)}, {v(V4_FH + 8 * b + 4 * rt, 4)}, {c}")
                if n == 0 and j + 1 < 12:
                    issued = min(12, j + 4)
                    k.I(f"s_waitcnt vmcnt({4 * (issued - (j + 2))})")
                if n < 4:
                    for t in grps[n]:
                        k.I(t)
                n += 1
    k.L(lab_done)
    prio_valu(k)
    k.I("s_waitcnt lgkmcnt(0)")
    istamp(k, 4)
    srd(k, S_A, S_WS, 16 << 20, PART)
    k.I(f"""
    s_lshl_b32 {s(S_T0)}, {s(S_C)}, 21
    s_lshl_b32 {s(S_T1)}, {s(S_G)}, 16
    s_add_u32 {s(S_T0)}, {s(S_T0)}, {s(S_T1)}
    s_lshl_b32 {s(S_T1)}, {s(S_WAVE)}, 13
    s_add_u32 {s(S_T0)}, {s(S_T0)}, {s(S_T1)}
    """)
    k.nop(8)
    n = 0
    for ct in range(4):
        for rt in range(2):
            for hf in range(2):
                A = V4_ACC + 32 * ct + 16 * rt + 8 * hf
                P = V4_T + 4 * (n & 3)
                for q in range(4):
                    k.I(f"v_cvt_pk_bf16_f32 {v(P + q)}, {v(A + 2 * q)}, {v(A + 2 * q + 1)}")
                k.I(f"s_add_u32 {s(S_T1)}, {s(S_T0)}, {rt * 32768 + (2 * ct + hf) * 1024}")
                k.I(f"buffer_store_dwordx4 {v(P, 4)}, {v(V_L16)}, {s(S_A, 4)}, {s(S_T1)} offen {mods}")
                n += 1


def gen_stage(name, which):
    k = Asm()
    kernel_header(k, name)
    end = name.upper() + "_END"
    k.I(f"""
    s_cmp_ge_u32 s2, 256
    s_cbranch_scc1 {end}
    """)
    prologue(k)
    stamp(k, 0)
    if which == "w2":
        stage_w2(k)
        stamp_flush(k, 3, S_WS, S_WAVE, 2)
    elif which == "f":
        stage_f(k)
        stamp_flush(k, 5, S_WS, S_WAVE, 3)
    else:
        s64_weights(k, S_PWO)
        stage_o(k)
        stamp_flush(k, 3, S_WS, S_WAVE, 4)
    k.L(end)
    k.I("s_endpgm")
    return k
```

```python
import sys
sys.path.insert(0, "gen")
from build import build
import common
if '--prof' in sys.argv:
    common.PROF_ON = True
    sys.argv.remove('--prof')
import k1, attn, roleb, k2
common.K1_STORE_MODS = "sc1"
common.A_PRIO = 3; common.A_PRIO_LOOP = 1; common.B_PRIO = 2; common.B_LOOP_PRIO = 0
common.O_STORE_MODS = "sc1"
common.B_STORE_MODS = "sc1"
roleb.INNER_STAMPS = False
K1_TAKES = [{}, {"K1_DEC_H": True, "K1_EPI_H": True}, {"K1_STATS": True}, {"K1_STATS": True, "K1_NOZERO": True}, {"K1_NOPF": True}, {"K1_EPI_K": True}, {"K1_VTYPE": True}, {"K1_LOADER": True}, {"K1_LOADER": True, "K1_NOCS_A": True, "K1_NOCS_B": True}, {"K1_LOADER": True, "K1_LOADER_H": True}]
def kernels():
    K = []
    K.append(dict(name=k1.NAME, asm=k1.gen(), grid=256, block=k1.BLOCK, lds=k1.LDS_BYTES, vgpr=k1.VGPRS, takes=K1_TAKES))
    K.append(dict(name=k2.NAME, asm=k2.gen(), grid=512, block=k2.BLOCK, lds=k2.LDS_BYTES, vgpr=k2.VGPRS,
                  takes=[{}, {"A_SLOW": [True, False], "A_STORE": [False, True]}, {"K2_B": True}]))
    return K
if __name__ == "__main__":
    out = sys.argv[1] if len(sys.argv) > 1 else "out2.s"
    build(kernels(), out)
```

```python
from common import *
import common

TILEB = 2304
SLOTB = 8 * TILEB
NSLOT = 3
L_FLAG = NSLOT * SLOTB
LDS_BYTES = L_FLAG + 64

S_KV, S_Q, S_O = 8, 12, 16
S_WS = 20
S_WAVE, S_HEAD, S_JB = 22, 23, 24
S_NXT, S_DMA = 26, 27
S_GO = 28
S_CNT, S_PASS, S_T0, S_T1 = 29, 30, 31, 32
S_LW = 33
S_GO0 = 36
S_EX = 38

V_L16 = 1
V_A0, V_A1 = 2, 3
V_VA = 2
V_AK = 4
V_Q = 10
V_K = 18
V_V = 30
V_P = 54
V_S = 62
V_O = 94
V_CN = 126
V_T = 158
VGPRS = 176

EXP = set()


def dma_chunk(k):
    k.I(f"""
    s_add_u32 m0, {s(S_DMA)}, {s(S_LW)}
    s_add_u32 {s(S_T0)}, {s(S_GO)}, 8192
    buffer_load_dwordx4 {v(V_L16)}, {s(S_KV, 4)}, {s(S_GO)} offen lds
    buffer_load_dwordx4 {v(V_L16)}, {s(S_KV, 4)}, {s(S_GO)} offen offset:1024 lds
    s_add_u32 m0, m0, {4 * TILEB}
    s_add_u32 {s(S_GO)}, {s(S_GO)}, 16384
    buffer_load_dwordx4 {v(V_L16)}, {s(S_KV, 4)}, {s(S_T0)} offen lds
    buffer_load_dwordx4 {v(V_L16)}, {s(S_KV, 4)}, {s(S_T0)} offen offset:1024 lds
    """)


def load_q(k):
    k.I(f"""
    s_lshl_b32 {s(S_T0)}, {s(S_HEAD)}, 6
    s_lshl_b32 {s(S_T1)}, {s(S_JB)}, 3
    s_add_u32 {s(S_T0)}, {s(S_T0)}, {s(S_T1)}
    s_lshl_b32 {s(S_T1)}, {s(S_WAVE)}, 1
    s_add_u32 {s(S_T0)}, {s(S_T0)}, {s(S_T1)}
    s_lshl_b32 {s(S_T0)}, {s(S_T0)}, 10
    buffer_load_dwordx4 {v(V_Q, 4)}, {v(V_L16)}, {s(S_Q, 4)}, {s(S_T0)} offen
    buffer_load_dwordx4 {v(V_Q + 4, 4)}, {v(V_L16)}, {s(S_Q, 4)}, {s(S_T0)} offen offset:1024
    """)


def next_slot(k, r):
    k.I(f"""
    s_add_u32 {s(r)}, {s(r)}, {SLOTB}
    s_cmp_eq_u32 {s(r)}, {NSLOT * SLOTB}
    s_cselect_b32 {s(r)}, 0, {s(r)}
    """)


def mfma(k, d, a_, b_, c):
    if "nopv" in EXP and V_O <= d < V_O + 32:
        return
    if "noqk" in EXP and d < V_O:
        return
    k.I(f"v_mfma_f32_32x32x16_bf16 {v(d, 16)}, {v(a_, 4)}, {v(b_, 4)}, {c}")


def dma_one(k, c, i):
    lds = (c % NSLOT) * SLOTB + (i >> 1) * 4 * TILEB
    go = c * 16384 + (i >> 1) * 8192
    k.I(f"""
    s_add_u32 m0, {s(S_LW)}, {lds}
    s_add_u32 {s(S_T0)}, {s(S_GO0)}, {go}
    buffer_load_dwordx4 {v(V_L16)}, {s(S_KV, 4)}, {s(S_T0)} offen offset:{(i & 1) * 1024} lds
    """)


def tile_off(t):
    return ((t >> 3) % NSLOT) * SLOTB + (t & 7) * TILEB


def subtile(k, t, z):
    S = V_S + 16 * z
    Sn = V_S + 16 * (1 - z)
    b, pb, nb, fb = t % 3, (t - 1) % 3, (t + 1) % 3, (t + 2) % 3
    O, Op = V_O + 16 * z, V_O + 16 * (1 - z)
    c_, u = t >> 3, t & 7
    rd = "nods" not in EXP and z == 0 and t + 2 < 64
    foff = tile_off(t + 2) if t + 2 < 64 else 0
    last = t == 63

    def e(i):
        k.I(f"v_exp_f32 {v(S + i)}, {v(S + i)}")

    def c(j):
        k.I(f"v_cvt_pk_bf16_f32 {v(V_P + j)}, {v(S + 2 * j)}, {v(S + 2 * j + 1)}")

    def dma_spot(n):
        if "nobar" in EXP or z == 0 or c_ + 2 > 7:
            return
        if u == 6:
            dma_one(k, c_ + 2, n)
        if u == 7:
            dma_one(k, c_ + 2, 2 + n)

    def pv2():
        mfma(k, Op, V_V + 8 * (pb if z == 0 else b) + 4, V_P + 4, v(Op, 16))
        if z == 0:
            if rd:
                k.I(f"ds_read_b128 {v(V_K + 4 * fb, 4)}, {v(V_AK)} offset:{foff}")
        elif "nowait" not in EXP and not last:
            k.I(f"s_waitcnt lgkmcnt({3 if t + 2 < 64 and 'nods' not in EXP else 0})")

    def qk():
        if z == 0:
            mfma(k, Sn, V_K + 4 * b, V_Q + 4, v(V_CN + 16, 16))
            if rd:
                k.I(f"ds_read_b128 {v(V_V + 8 * fb, 4)}, {v(V_A0)} offset:{foff}")
        elif not last:
            mfma(k, Sn, V_K + 4 * nb, V_Q, v(V_CN, 16))
            if u == 5 and c_ < 7 and "nobar" not in EXP:
                k.I("s_waitcnt vmcnt(0)")
                k.I("s_barrier")
                stamp(k, 2 + c_)
            dma_spot(0)

    def pv1():
        mfma(k, O, V_V + 8 * b, V_P, v(O, 16))
        if rd:
            k.I(f"ds_read_b128 {v(V_V + 8 * fb + 4, 4)}, {v(V_A1)} offset:{foff}")
        dma_spot(1)

    def c7p():
        k.I(f"v_cvt_pk_bf16_f32 {v(V_P + 7)}, {v(Sn + 14)}, {v(Sn + 15)}")

    if not common.A_CLUSTER:
        e(0); e(1); c7p(); e(2); e(3)
        pv2()
        c(0); e(4); e(5); c(1); e(6); e(7)
        qk()
        c(2); e(8); e(9); c(3); e(10); e(11)
        pv1()
        c(4); e(12); e(13); c(5); e(14); e(15); c(6)
    else:
        e(0); e(1); c7p(); e(2); e(3); c(0); e(4); e(5); c(1)
        pv2()
        e(6); e(7); c(2)
        qk()
        c(3); e(8); e(9)
        if z == 1:
            k.I("s_nop 0")
        pv1()
        e(10); e(11); c(4); e(12); e(13); c(5); e(14); e(15); c(6)


def gen_role(k, P="A"):
    T = V_T
    k.I(f"""
    s_load_dwordx2 {s(S_WS, 2)}, s[0:1], {KA_WS}
    v_lshrrev_b32 v1, 6, v0
    v_and_b32 v0, 63, v0
    s_and_b32 {s(S_T0)}, s2, 7
    v_readfirstlane_b32 {s(S_WAVE)}, v1
    s_lshl_b32 {s(S_T0)}, {s(S_T0)}, 2
    s_bfe_u32 {s(S_T1)}, s2, 0x20003
    s_add_u32 {s(S_HEAD)}, {s(S_T0)}, {s(S_T1)}
    s_bfe_u32 {s(S_JB)}, s2, 0x30005
    v_lshlrev_b32 {v(V_L16)}, 4, v0
    s_mul_i32 {s(S_LW)}, {s(S_WAVE)}, {TILEB}
    s_lshl_b32 {s(S_GO0)}, {s(S_HEAD)}, 6
    s_add_u32 {s(S_GO0)}, {s(S_GO0)}, {s(S_WAVE)}
    s_lshl_b32 {s(S_GO0)}, {s(S_GO0)}, 11
    s_mov_b32 {s(S_PASS)}, 0
    s_waitcnt lgkmcnt(0)
    """)
    stamp(k, 0)
    srd(k, S_KV, S_WS, 4 << 20, KVF)
    srd(k, S_Q, S_WS, 2 << 20, QF)
    srd(k, S_O, S_WS, 2 << 20, OF)
    k.I(f"""
    s_mov_b32 {s(S_GO)}, {s(S_GO0)}
    s_mov_b32 {s(S_DMA)}, 0
    """)
    dma_chunk(k)
    k.I(f"s_mov_b32 {s(S_DMA)}, {SLOTB}")
    dma_chunk(k)
    load_q(k)
    if common.A_L2PF:
        k.I(f"""
        v_lshlrev_b32 {v(T)}, 7, v0
        s_lshl_b32 {s(S_T0)}, {s(S_HEAD)}, 17
        s_lshl_b32 {s(S_T1)}, {s(S_JB)}, 14
        s_add_u32 {s(S_T0)}, {s(S_T0)}, {s(S_T1)}
        s_lshl_b32 {s(S_T1)}, {s(S_WAVE)}, 12
        s_add_u32 {s(S_T0)}, {s(S_T0)}, {s(S_T1)}
        s_mov_b32 exec_hi, 0
        buffer_load_dword {v(V_T + 15)}, {v(T)}, {s(S_KV, 4)}, {s(S_T0)} offen
        s_mov_b64 exec, -1
        """)
    k.I(f"""
    v_lshrrev_b32 {v(T)}, 5, v0
    v_lshlrev_b32 {v(T)}, 8, {v(T)}
    v_and_b32 {v(T + 1)}, 15, v0
    v_lshl_add_u32 {v(T)}, {v(T + 1)}, 4, {v(T)}
    v_add_u32 {v(T)}, 1024, {v(T)}
    v_mov_b32 {v(T + 2)}, {2048 + 16}
    v_add_u32 {v(T + 3)}, -4, {v(T + 1)}
    v_cmp_gt_u32 vcc, 8, {v(T + 3)}
    v_mov_b32 {v(T + 4)}, {2048 + 80}
    s_nop 0
    v_cndmask_b32 {v(T + 2)}, {v(T + 2)}, {v(T + 4)}, vcc
    v_cmp_eq_u32 vcc, 0, {v(T + 1)}
    v_mov_b32 {v(T + 4)}, 2048
    s_nop 0
    v_cndmask_b32 {v(T + 2)}, {v(T + 2)}, {v(T + 4)}, vcc
    v_cmp_eq_u32 vcc, 4, {v(T + 1)}
    v_mov_b32 {v(T + 4)}, {2048 + 64}
    s_nop 0
    v_cndmask_b32 {v(T + 2)}, {v(T + 2)}, {v(T + 4)}, vcc
    v_and_b32 {v(T + 3)}, 16, v0
    v_cmp_eq_u32 vcc, 0, {v(T + 3)}
    v_add_u32 {v(T + 4)}, 512, {v(T)}
    s_nop 0
    v_cndmask_b32 {v(V_VA)}, {v(T + 2)}, {v(T)}, vcc
    v_cndmask_b32 {v(V_VA + 1)}, {v(T + 2)}, {v(T + 4)}, vcc
    """)
    k.I(f"""
    v_and_b32 {v(T + 1)}, 11, v0
    v_cmp_eq_u32 vcc, 0, {v(T + 1)}
    v_mov_b32 {v(T + 1)}, 0x3f803f80
    v_mov_b32 {v(T + 5)}, {L_FLAG}
    v_cndmask_b32 {v(T)}, 0, {v(T + 1)}, vcc
    v_mov_b32 {v(T + 1)}, {v(T)}
    v_mov_b32 {v(T + 2)}, {v(T)}
    v_mov_b32 {v(T + 3)}, {v(T)}
    v_add_u32 {v(T + 4)}, {s(S_LW)}, {v(V_L16)}
    v_mov_b32 {v(T + 6)}, 0
    s_mov_b64 exec, 0xffff
    """)
    for sl in range(NSLOT):
        for tt in range(2):
            k.I(f"ds_write_b128 {v(T + 4)}, {v(T, 4)} offset:{sl * SLOTB + tt * 4 * TILEB + 2048}")
    k.I(f"""
    ds_write_b32 {v(T + 5)}, {v(T + 6)}
    s_mov_b64 exec, -1
    """)
    for i in range(32):
        k.I(f"v_mov_b32 {v(V_CN + i)}, 0")
    k.L(f"{P}_PASS")
    for i in range(32):
        k.I(f"v_mov_b32 {v(V_O + i)}, 0")
    for i in range(8):
        k.I(f"v_mov_b32 {v(V_P + i)}, 0")
    for i in range(4):
        k.I(f"v_mov_b32 {v(V_V + 16 + 4 + i)}, 0")
    k.I(f"""
    v_mov_b32 {v(V_S + 16 + 14)}, 0
    v_mov_b32 {v(V_S + 16 + 15)}, 0
    v_mov_b32 {v(V_AK)}, {v(V_L16)}
    s_waitcnt vmcnt({7 if common.A_L2PF else 6}) lgkmcnt(0)
    """)
    k.I("s_barrier")
    stamp(k, 1)
    k.I(f"""
    ds_read_b128 {v(V_K, 4)}, {v(V_AK)}
    ds_read_b128 {v(V_V, 4)}, {v(V_A0)}
    ds_read_b128 {v(V_V + 4, 4)}, {v(V_A1)}
    ds_read_b128 {v(V_K + 4, 4)}, {v(V_AK)} offset:{TILEB}
    ds_read_b128 {v(V_V + 8, 4)}, {v(V_A0)} offset:{TILEB}
    ds_read_b128 {v(V_V + 12, 4)}, {v(V_A1)} offset:{TILEB}
    s_waitcnt vmcnt({1 if common.A_L2PF else 0}) lgkmcnt(0)
    """)
    mfma(k, V_S, V_K, V_Q, v(V_CN, 16))
    if common.A_PRIO_LOOP is not None:
        k.I(f"s_setprio {common.A_PRIO_LOOP}")
    k.nop(12)
    for t in range(64):
        for z in range(2):
            subtile(k, t, z)
    stamp(k, 9)
    k.I(f"v_cvt_pk_bf16_f32 {v(V_P + 7)}, {v(V_S + 16 + 14)}, {v(V_S + 16 + 15)}")
    k.nop(2)
    mfma(k, V_O + 16, V_V + 8 * (63 % 3) + 4, V_P + 4, v(V_O + 16, 16))
    k.nop(12)
    k.I(f"""
    v_rcp_f32 {v(T)}, {v(V_O + 8)}
    v_rcp_f32 {v(T + 1)}, {v(V_O + 16 + 8)}
    s_cmp_lg_u32 {s(S_PASS)}, {1 if EXP else 0}
    s_cbranch_scc1 {P}_STORE
    v_mul_f32 {v(T + 2)}, 0, {v(V_O + 8)}
    """)
    for z in range(2):
        for i in range(9):
            if z == 0 and i == 8:
                continue
            k.I(f"v_fma_f32 {v(T + 2)}, {v(V_O + 16 * z + i)}, 0, {v(T + 2)}")
    k.I(f"""
    v_cmp_u_f32 vcc, {v(T + 2)}, {v(T + 2)}
    s_mov_b64 {s(S_EX, 2)}, vcc
    v_min_f32 {v(T + 2)}, {v(V_O + 8)}, {v(V_O + 16 + 8)}
    v_mov_b32 {v(T + 3)}, {hx(f2u(2.0 ** -40))}
    v_cmp_nge_f32 vcc, {v(T + 2)}, {v(T + 3)}
    s_or_b64 vcc, vcc, {s(S_EX, 2)}
    s_cbranch_vccz {P}_OK
    v_mov_b32 {v(T + 2)}, {L_FLAG}
    v_mov_b32 {v(T + 3)}, 1
    ds_write_b32 {v(T + 2)}, {v(T + 3)}
    """)
    k.L(f"{P}_OK")
    k.I(f"""
    s_waitcnt lgkmcnt(0)
    s_barrier
    v_mov_b32 {v(T + 2)}, {L_FLAG}
    ds_read_b32 {v(T + 3)}, {v(T + 2)}
    s_waitcnt lgkmcnt(0)
    v_readfirstlane_b32 {s(S_T0)}, {v(T + 3)}
    s_cmp_lg_u32 {s(S_T0)}, 0
    s_cbranch_scc1 {P}_SLOW
    """)
    k.L(f"{P}_STORE")
    k.I(f"""
    s_lshl_b32 {s(S_T0)}, {s(S_JB)}, 3
    s_lshl_b32 {s(S_T1)}, {s(S_WAVE)}, 1
    s_add_u32 {s(S_T0)}, {s(S_T0)}, {s(S_T1)}
    s_lshl_b32 {s(S_T0)}, {s(S_T0)}, 5
    s_add_u32 {s(S_T0)}, {s(S_T0)}, {s(S_HEAD)}
    s_lshl_b32 {s(S_T0)}, {s(S_T0)}, 10
    """)
    for z in range(2):
        for i in range(8):
            k.I(f"v_mul_f32 {v(V_O + 16 * z + i)}, {v(V_O + 16 * z + i)}, {v(T + z)}")
        for i in range(4):
            k.I(f"v_cvt_pk_bf16_f32 {v(V_P + 4 * z + i)}, {v(V_O + 16 * z + 2 * i)}, {v(V_O + 16 * z + 2 * i + 1)}")
        k.I(f"buffer_store_dwordx4 {v(V_P + 4 * z, 4)}, {v(V_L16)}, {s(S_O, 4)}, {s(S_T0)} offen {common.O_STORE_MODS}")
        if z == 0:
            k.I(f"s_add_u32 {s(S_T0)}, {s(S_T0)}, {32 * 1024}")
    k.L(f"{P}_DONE")


def gen_slow(k, P="A"):
    k.L(f"{P}_SLOW")
    M = V_T + 4
    k.I(f"""
    s_mov_b32 {s(S_PASS)}, 1
    v_mov_b32 {v(M)}, 0xff800000
    v_mov_b32 {v(M + 1)}, 0xff800000
    s_mov_b32 {s(S_GO)}, {s(S_GO0)}
    s_mov_b32 {s(S_CNT)}, 0
    """)
    k.L(f"{P}_SLOW_C")
    k.I(f"""
    s_barrier
    s_mov_b32 {s(S_DMA)}, 0
    """)
    dma_chunk(k)
    k.I(f"""
    s_waitcnt vmcnt(0)
    s_barrier
    v_mov_b32 {v(V_AK)}, {v(V_L16)}
    s_mov_b32 {s(S_T1)}, 0
    """)
    k.L(f"{P}_SLOW_T")
    k.I(f"""
    ds_read_b128 {v(V_K, 4)}, {v(V_AK)}
    s_waitcnt lgkmcnt(0)
    """)
    mfma(k, V_S, V_K, V_Q, "0")
    mfma(k, V_S + 16, V_K, V_Q + 4, "0")
    k.I(f"v_add_u32 {v(V_AK)}, {TILEB}, {v(V_AK)}")
    k.nop(12)
    for z in range(2):
        for i in range(8):
            k.I(f"v_max3_f32 {v(M + z)}, {v(V_S + 16 * z + 2 * i)}, {v(V_S + 16 * z + 2 * i + 1)}, {v(M + z)}")
    k.I(f"""
    s_add_u32 {s(S_T1)}, {s(S_T1)}, 1
    s_cmp_lt_u32 {s(S_T1)}, 8
    s_cbranch_scc1 {P}_SLOW_T
    s_add_u32 {s(S_CNT)}, {s(S_CNT)}, 1
    s_cmp_lt_u32 {s(S_CNT)}, 8
    s_cbranch_scc1 {P}_SLOW_C
    """)
    for z in range(2):
        k.I(f"v_mov_b32 {v(M + 2)}, {v(M + z)}")
        k.nop(2)
        k.I(f"""
        v_permlane32_swap_b32 {v(M + 2)}, {v(M + z)}
        v_max_f32 {v(M + z)}, {v(M + z)}, {v(M + 2)}
        """)
        for i in range(16):
            k.I(f"v_sub_f32 {v(V_CN + 16 * z + i)}, 0, {v(M + z)}")
    k.I(f"""
    s_barrier
    s_mov_b32 {s(S_GO)}, {s(S_GO0)}
    s_mov_b32 {s(S_DMA)}, 0
    """)
    dma_chunk(k)
    k.I(f"s_mov_b32 {s(S_DMA)}, {SLOTB}")
    dma_chunk(k)
    load_q(k)
    if common.A_L2PF:
        k.I(f"buffer_load_dword {v(V_T + 15)}, {v(V_L16)}, {s(S_KV, 4)}, 0 offen")
    k.I(f"s_branch {P}_PASS")


NAME = "k2a_kernel"
BLOCK = 256


def gen():
    k = Asm()
    kernel_header(k, NAME)
    k.I("""
    s_cmp_ge_u32 s2, 256
    s_cbranch_scc1 K2A_END
    """)
    gen_role(k)
    stamp_flush(k, 10, S_WS, S_WAVE, 1)
    k.L("K2A_END")
    k.I("s_endpgm")
    gen_slow(k)
    return k


TAKES = [{}, {"A_SLOW": [True, False], "A_STORE": [False, True]}, {"A_OK": True}]
```

```python
import struct
from asmlib import *

QF = 0
KVF = 2 << 20
HSF = 6 << 20
X1F = 8 << 20
OF = 10 << 20
PART = 12 << 20
HIDF = 12 << 20
WT = 18 << 20
U_W2, U_W3, U_W4, U_WO, U_END = 0, 512, 1888, 3264, 3776
GOFF = 28 << 20
STOFF = GOFF + 65536
CS3 = STOFF + (2048 * 128)
FLAGS = 29 << 20
WS_USED = 30 << 20

KA_X, KA_WQKV, KA_WO, KA_BX, KA_W1, KA_W2, KA_W3, KA_W4, KA_GATE, KA_OUT, KA_DBG, KA_WS = [8 * i for i in range(12)]

SRD3 = 0x00020000


def f2u(x):
    return struct.unpack("<I", struct.pack("<f", x))[0]


def hx(x):
    return f"0x{x & 0xffffffff:x}"


def srd(k, dst, base_lo, nbytes, add=0):
    if add:
        k.I(f"s_add_u32 {s(dst)}, {s(base_lo)}, {hx(add)}")
        k.I(f"s_addc_u32 {s(dst + 1)}, {s(base_lo + 1)}, 0")
    else:
        k.I(f"s_mov_b32 {s(dst)}, {s(base_lo)}")
        k.I(f"s_mov_b32 {s(dst + 1)}, {s(base_lo + 1)}")
    k.I(f"s_mov_b32 {s(dst + 2)}, {hx(nbytes)}")
    k.I(f"s_mov_b32 {s(dst + 3)}, {hx(SRD3)}")


def kernel_header(k, name):
    k.raw(f".globl {name}\n.p2align 8\n.type {name},@function")
    k.L(name)


def kernel_desc(name, vgpr, sgpr=96, accum=None):
    accum = accum if accum is not None else ((vgpr + 3) // 4) * 4
    return f""".p2align 6
.amdhsa_kernel {name}
  .amdhsa_next_free_vgpr {vgpr}
  .amdhsa_next_free_sgpr {sgpr}
  .amdhsa_accum_offset {accum}
  .amdhsa_group_segment_fixed_size 0
  .amdhsa_kernarg_size 96
  .amdhsa_user_sgpr_count 2
  .amdhsa_user_sgpr_kernarg_segment_ptr 1
  .amdhsa_system_sgpr_workgroup_id_x 1
  .amdhsa_float_denorm_mode_32 3
.end_amdhsa_kernel
"""


def sum_halves(k, val, tmp):
    k.I(f"v_mov_b32 {v(tmp)}, {v(val)}")
    k.nop(2)
    k.I(f"v_permlane32_swap_b32 {v(tmp)}, {v(val)}")
    k.I(f"v_add_f32 {v(val)}, {v(val)}, {v(tmp)}")


LOG2E = 1.4426950408889634
GELU_C0 = -2.0 * 0.7978845608028654 * LOG2E
GELU_C1 = GELU_C0 * 0.044715


def gelu_pairs(k, pairs, tmp, c0pair, c1pair):
    n = len(pairs)
    for i, y in enumerate(pairs):
        k.I(f"v_pk_mul_f32 {v(tmp + 2 * i, 2)}, {v(y, 2)}, {v(y, 2)}")
    for i, y in enumerate(pairs):
        k.I(f"v_pk_fma_f32 {v(tmp + 2 * i, 2)}, {v(tmp + 2 * i, 2)}, {s(c1pair, 2)}, {v(c0pair, 2)}")
    for i, y in enumerate(pairs):
        k.I(f"v_pk_mul_f32 {v(tmp + 2 * i, 2)}, {v(tmp + 2 * i, 2)}, {v(y, 2)}")
    for i in range(2 * n):
        k.I(f"v_exp_f32 {v(tmp + i)}, {v(tmp + i)}")
    for i in range(n):
        k.I(f"v_pk_add_f32 {v(tmp + 2 * i, 2)}, {v(tmp + 2 * i, 2)}, 1.0 op_sel_hi:[1,0]")
    for i in range(2 * n):
        k.I(f"v_rcp_f32 {v(tmp + i)}, {v(tmp + i)}")
    for i, y in enumerate(pairs):
        k.I(f"v_pk_mul_f32 {v(y, 2)}, {v(y, 2)}, {v(tmp + 2 * i, 2)}")


PROF = 40 << 20
PROF_ON = False
S_ST = 68


def stamp(k, i):
    if PROF_ON:
        k.I("s_memrealtime s[86:87]")
        if i == 0:
            k.I("s_memtime s[88:89]")
        k.I("s_waitcnt lgkmcnt(0)")
        k.I(f"s_mov_b32 {s(S_ST + i)}, s86")


def stamp_flush(k, n, ws_pair, wave_s, kid):
    if not PROF_ON:
        return
    k.I("s_waitcnt vmcnt(0) lgkmcnt(0)")
    k.I("s_memrealtime s[86:87]")
    k.I("s_memtime s[84:85]")
    k.I("s_waitcnt lgkmcnt(0)")
    k.I(f"s_mov_b32 {s(S_ST + n)}, s86")
    k.I(f"s_sub_u32 {s(S_ST + n + 1)}, s84, s88")
    srd(k, 92, ws_pair, 1 << 20, PROF + kid * (1 << 20))
    k.I(f"s_lshl_b32 s90, s2, 4")
    k.I(f"s_add_u32 s90, s90, {s(wave_s)}")
    k.I(f"s_lshl_b32 s90, s90, 6")
    k.I("s_mov_b64 exec, 1")
    for i in range(n + 2):
        k.I(f"v_mov_b32 v120, {s(S_ST + i)}")
        k.I(f"v_mov_b32 v121, {4 * i}")
        k.I(f"buffer_store_dword v120, v121, s[92:95], s90 offen")
        k.I("s_nop 1")
    k.I("s_waitcnt vmcnt(0)")


O_STORE_MODS = ""
K1_STORE_MODS = ""
B_STORE_MODS = ""
K1_PREFETCH = False


F_X1 = 0
F_PT = 32
F_O = 64
NFLAGS = 72


def signal(k, ws_pair, idx_s, base_idx, wave_s, tmp_s, vt, barrier=True):
    k.I("s_waitcnt vmcnt(0)")
    if barrier:
        k.I("s_barrier")
    lab = k.uid("SIG")
    k.I(f"""
    s_cmp_lg_u32 {s(wave_s)}, 0
    s_cbranch_scc1 {lab}
    s_add_u32 {s(tmp_s)}, {s(ws_pair)}, {hx(FLAGS + base_idx * 128)}
    s_addc_u32 {s(tmp_s + 1)}, {s(ws_pair + 1)}, 0
    s_lshl_b32 vcc_lo, {s(idx_s)}, 7
    v_mov_b32 {v(vt)}, vcc_lo
    v_mov_b32 {v(vt + 1)}, 1
    s_mov_b64 exec, 1
    global_atomic_add {v(vt)}, {v(vt + 1)}, {s(tmp_s, 2)} sc1
    s_mov_b64 exec, -1
    """)
    k.L(lab)


def wait_flag(k, ws_pair, idx_s, base_idx, target, wave_s, tmp_s, vt):
    lab = k.uid("WT")
    k.I(f"""
    s_cmp_lg_u32 {s(wave_s)}, 0
    s_cbranch_scc1 {lab}_done
    s_add_u32 {s(tmp_s)}, {s(ws_pair)}, {hx(FLAGS + base_idx * 128)}
    s_addc_u32 {s(tmp_s + 1)}, {s(ws_pair + 1)}, 0
    s_lshl_b32 vcc_lo, {s(idx_s)}, 7
    v_mov_b32 {v(vt)}, vcc_lo
    s_mov_b32 vcc_hi, 0x40000
    """)
    k.L(lab)
    k.I(f"""
    global_load_dword {v(vt + 1)}, {v(vt)}, {s(tmp_s, 2)} sc1
    s_waitcnt vmcnt(0)
    v_readfirstlane_b32 vcc_lo, {v(vt + 1)}
    s_cmp_ge_u32 vcc_lo, {target}
    s_cbranch_scc1 {lab}_done
    s_sub_u32 vcc_hi, vcc_hi, 1
    s_cmp_eq_u32 vcc_hi, 0
    s_cbranch_scc1 {lab}_done
    s_sleep 2
    s_branch {lab}
    """)
    k.L(lab + "_done")
    k.I("s_barrier")
B_PRIO = 2
A_PRIO = 0
B_LOOP_PRIO = None
A_PRIO_LOOP = None
K2X = set()
A_CLUSTER = False
A_L2PF = False
B_L2PF = False
B_BURST_PRIO = None
TR_ISSUE_AFTER = 0
TR_WAIT_AFTER = 3
```

```python
from common import *
import common

NAME = "k1_kernel"
SLOT = 32768
L_GATE = 131072
L_STAT = L_GATE + 1024
L_CSUM = L_STAT + 1024
L_TR = L_CSUM + 512
LDS_BYTES = L_TR + 20480
QSCALE = 0.25 * LOG2E

S_X, S_W, S_O, S_GW, S_GO = 8, 12, 16, 20, 24
S_WS = 28
S_W1P, S_GP = 30, 32
S_RB, S_CB, S_WAVE, S_TYPE = 34, 35, 36, 37
S_RS, S_RS16, S_T0, S_T1, S_T2 = 38, 39, 40, 41, 42
S_XB, S_WCUR, S_LW, S_LDSW = 43, 44, 45, 46
S_OB = 47
S_C1 = 48
S_EX = 50
S_WR, S_WC = 52, 53


def gen():
    k = Asm()
    kernel_header(k, NAME)
    k.I(f"""
    s_cmp_ge_u32 s2, 256
    s_cbranch_scc1 K1_END
    s_load_dwordx4 s[4:7], s[0:1], {KA_X}
    s_load_dwordx2 {s(S_W1P, 2)}, s[0:1], {KA_W1}
    s_load_dwordx2 {s(S_GP, 2)}, s[0:1], {KA_GATE}
    s_load_dwordx2 {s(S_WS, 2)}, s[0:1], {KA_WS}
    v_lshrrev_b32 v1, 6, v0
    v_and_b32 v0, 63, v0
    s_and_b32 {s(S_T0)}, s2, 7
    v_readfirstlane_b32 {s(S_WAVE)}, v1
    s_lshr_b32 {s(S_T1)}, s2, 3
    s_and_b32 {s(S_RB)}, {s(S_T0)}, 3
    s_lshl_b32 {s(S_RB)}, {s(S_RB)}, 2
    s_and_b32 {s(S_T2)}, {s(S_T1)}, 3
    s_add_u32 {s(S_RB)}, {s(S_RB)}, {s(S_T2)}
    s_lshr_b32 {s(S_T0)}, {s(S_T0)}, 2
    s_lshr_b32 {s(S_T2)}, {s(S_T1)}, 2
    s_cmp_lt_u32 {s(S_T1)}, 8
    s_cbranch_scc1 K1_DEC_H
    s_mul_i32 {s(S_CB)}, {s(S_T0)}, 6
    s_add_u32 {s(S_CB)}, {s(S_CB)}, {s(S_T2)}
    s_sub_u32 {s(S_CB)}, {s(S_CB)}, 2
    s_branch K1_DEC_DONE
    """)
    k.L("K1_DEC_H")
    k.I(f"""
    s_lshl_b32 {s(S_CB)}, {s(S_T0)}, 1
    s_add_u32 {s(S_CB)}, {s(S_CB)}, {s(S_T2)}
    s_add_u32 {s(S_CB)}, {s(S_CB)}, 12
    """)
    k.L("K1_DEC_DONE")
    k.I(f"""
    s_lshr_b32 {s(S_TYPE)}, {s(S_CB)}, 2
    s_waitcnt lgkmcnt(0)
    """)
    stamp(k, 0)
    srd(k, S_X, 4, 2048 * 512 * 2)
    k.I(f"""
    s_cmp_eq_u32 {s(S_TYPE)}, 3
    s_cselect_b32 {s(S_W)}, {s(S_W1P)}, s6
    s_cselect_b32 {s(S_W + 1)}, {s(S_W1P + 1)}, s7
    s_mov_b32 {s(S_W + 2)}, {hx(512 * 1536 * 2)}
    s_cselect_b32 {s(S_W + 2)}, {hx(512 * 512 * 2)}, {s(S_W + 2)}
    s_mov_b32 {s(S_W + 3)}, {hx(SRD3)}
    s_mov_b32 {s(S_RS)}, 3072
    s_cselect_b32 {s(S_RS)}, 1024, {s(S_RS)}
    s_cselect_b32 {s(S_T0)}, 12, 0
    s_sub_u32 {s(S_T0)}, {s(S_CB)}, {s(S_T0)}
    s_lshl_b32 {s(S_WCUR)}, {s(S_T0)}, 8
    s_lshl_b32 {s(S_RS16)}, {s(S_RS)}, 4
    s_cmp_ge_u32 {s(S_WAVE)}, 8
    s_cbranch_scc1 K1_STATS
    s_cmp_ge_u32 {s(S_WAVE)}, 4
    s_cbranch_scc1 K1_LOADER
    """)
    compute(k)
    loader(k)
    stats_wave(k)
    transposer(k)
    k.L("K1_END")
    k.I("s_endpgm")
    return k


V_AX = 4
V_AW = 12
V_FX = 16
V_FW = 32
V_ACC = 48
V_T = 112
V_L31, V_H = 2, 3


def frag_addr_setup(k, rowbase_s, quarter_s_list, ax, aw):
    t0, t1, t2, t3 = V_T, V_T + 1, V_T + 2, V_T + 3
    k.I(f"""
    v_and_b32 {v(V_L31)}, 31, v0
    v_lshrrev_b32 {v(V_H)}, 5, v0
    v_add_u32 {v(t0)}, {s(rowbase_s)}, {v(V_L31)}
    v_lshlrev_b32 {v(t0)}, 7, {v(t0)}
    v_bfe_u32 {v(t1)}, v0, 1, 3
    """)
    for st in range(4):
        k.I(f"""
        v_add_u32 {v(t2)}, {2 * st}, {v(V_H)}
        v_xor_b32 {v(t2)}, {v(t2)}, {v(t1)}
        v_lshl_add_u32 {v(ax + st)}, {v(t2)}, 4, {v(t0)}
        v_add_u32 {v(ax + 4 + st)}, 0x10000, {v(ax + st)}
        """)
    k.I(f"""
    v_bfe_u32 {v(t0)}, v0, 2, 2
    v_lshl_add_u32 {v(t1)}, {v(V_H)}, 3, {v(t0)}
    v_lshlrev_b32 {v(t1)}, 8, {v(t1)}
    v_bfe_u32 {v(t2)}, v0, 4, 1
    v_lshl_add_u32 {v(t1)}, {v(t2)}, 5, {v(t1)}
    v_and_b32 {v(t2)}, 3, v0
    v_lshl_add_u32 {v(t1)}, {v(t2)}, 3, {v(t1)}
    v_add_u32 {v(t1)}, 16384, {v(t1)}
    """)
    n = len(quarter_s_list)
    for i, qs in enumerate(quarter_s_list):
        k.I(f"""
        v_xor_b32 {v(t2)}, {s(qs)}, {v(t0)}
        v_lshl_add_u32 {v(aw + i)}, {v(t2)}, 6, {v(t1)}
        v_add_u32 {v(aw + n + i)}, 0x10000, {v(aw + i)}
        """)


V_AXB = 144
V_FG = 152
V_GA = 160
V_SX, V_SQ, V_GD, V_CS, V_ONES = 162, 163, 164, 165, 166
V_JUNK = 144


def reads_for(j, stats=False):
    st, sidx = j // 4, j % 4
    slot = st % 4
    hi = slot // 2
    so = (slot % 2) * SLOT
    b = j & 1
    g1, g2 = [], []
    xa = V_AX + 4 * hi + sidx
    g1.append(f"ds_read_b64_tr_b16 {v(V_FW + 8 * b + 0, 2)}, {v(V_AW + 2 * hi + 0)} offset:{so + sidx * 4096}")
    g1.append(f"ds_read_b64_tr_b16 {v(V_FW + 8 * b + 2, 2)}, {v(V_AW + 2 * hi + 0)} offset:{so + sidx * 4096 + 1024}")
    g1.append(f"ds_read_b128 {v(V_FX + 8 * b + 0, 4)}, {v(xa)} offset:{so}")
    if stats:
        g2.append(f"ds_read_b128 {v(V_FX + 8 * b + 4, 4)}, {v(V_AXB + 4 * hi + sidx)} offset:{so}")
    else:
        g2.append(f"ds_read_b128 {v(V_FX + 8 * b + 4, 4)}, {v(xa)} offset:{so + 4096}")
    g2.append(f"ds_read_b64_tr_b16 {v(V_FW + 8 * b + 4, 2)}, {v(V_AW + 2 * hi + 1)} offset:{so + sidx * 4096}")
    g2.append(f"ds_read_b64_tr_b16 {v(V_FW + 8 * b + 6, 2)}, {v(V_AW + 2 * hi + 1)} offset:{so + sidx * 4096 + 1024}")
    g3 = [f"ds_read_b128 {v(V_FG + 4 * b, 4)}, {v(V_GA)} offset:{j * 32}"] if stats else []
    return g1, g2, g3


def acc(ct, rt):
    return V_ACC + 32 * ct + 16 * rt


def mainloop(k, transposed, stats=False):
    k.I("s_barrier")
    stamp(k, 1)
    g1, g2, g3 = reads_for(0, stats)
    for t in g1 + g2 + g3:
        k.I(t)
    for j in range(32):
        b = j & 1
        st, sidx = j // 4, j % 4

        def mf(ct, rt):
            fw = v(V_FW + 8 * b + 4 * ct, 4)
            fx = v(V_FX + 8 * b + 4 * rt, 4)
            c = "0" if j == 0 else v(acc(ct, rt), 16)
            A, B = (fw, fx) if transposed else (fx, fw)
            k.I(f"v_mfma_f32_32x32x16_bf16 {v(acc(ct, rt), 16)}, {A}, {B}, {c}")

        def dots(i):
            if stats:
                k.I(f"v_dot2c_f32_bf16 {v(V_SX)}, {v(V_FX + 8 * b + i)}, {v(V_ONES)}")
                k.I(f"v_dot2c_f32_bf16 {v(V_SQ)}, {v(V_FX + 8 * b + i)}, {v(V_FX + 8 * b + i)}")
                k.I(f"v_dot2c_f32_bf16 {v(V_GD)}, {v(V_FX + 8 * b + i)}, {v(V_FG + 4 * b + i)}")
                k.I(f"v_dot2c_f32_bf16 {v(V_CS)}, {v(V_FW + 8 * b + i)}, {v(V_ONES)}")

        k.I("s_waitcnt lgkmcnt(0)")
        mf(0, 0)
        if sidx == 3 and st < 7:
            k.I("s_barrier")
        if j + 1 < 32:
            g1, g2, g3 = reads_for(j + 1, stats)
            for t in g1:
                k.I(t)
        dots(0)
        mf(0, 1)
        if j + 1 < 32:
            for t in g2:
                k.I(t)
        dots(1)
        mf(1, 0)
        if j + 1 < 32:
            for t in g3:
                k.I(t)
        dots(2)
        mf(1, 1)
        dots(3)
        if j == 15:
            stamp(k, 2)
    stamp(k, 3)


def prefetch(k):
    T = V_T
    SP = 56
    k.I(f"""
    s_cmp_lg_u32 {s(S_WAVE)}, 0
    s_cbranch_scc1 K1_NOPF
    s_lshr_b32 {s(S_T0)}, s2, 3
    s_and_b32 {s(S_T1)}, s2, 3
    s_lshl_b32 {s(S_T1)}, {s(S_T1)}, 9
    s_lshl_b32 {s(S_T2)}, {s(S_T0)}, 4
    s_add_u32 {s(S_T1)}, {s(S_T1)}, {s(S_T2)}
    v_and_b32 {v(T)}, 15, v0
    v_add_u32 {v(T + 1)}, {s(S_T1)}, {v(T)}
    v_lshlrev_b32 {v(T + 1)}, 10, {v(T + 1)}
    v_lshrrev_b32 {v(T + 2)}, 4, v0
    v_lshl_add_u32 {v(T + 3)}, {v(T + 2)}, 7, {v(T + 1)}
    buffer_load_dword {v(V_JUNK)}, {v(T + 3)}, {s(S_X, 4)}, 0 offen offset:256
    v_and_b32 {v(T + 4)}, 1, {v(T + 2)}
    v_lshl_add_u32 {v(T + 3)}, {v(T + 4)}, 7, {v(T + 1)}
    buffer_load_dword {v(V_JUNK + 1)}, {v(T + 3)}, {s(S_X, 4)}, 0 offen offset:768
    s_mul_i32 {s(S_T0)}, {s(S_T0)}, 12
    s_add_u32 {s(S_T0)}, {s(S_T0)}, 128
    s_bfe_u32 {s(S_T1)}, s2, 0x10002
    """)
    srd(k, SP, 6, 512 * 1536 * 2)
    k.I(f"""
    v_add_u32 {v(T + 3)}, {s(S_T0)}, {v(T + 2)}
    s_mov_b32 {s(S_T2)}, 3072
    v_mul_lo_u32 {v(T + 3)}, {v(T + 3)}, {s(S_T2)}
    v_min_u32 {v(T + 4)}, 11, {v(T)}
    v_lshl_add_u32 {v(T + 3)}, {v(T + 4)}, 7, {v(T + 3)}
    s_mul_i32 {s(S_T2)}, {s(S_T1)}, 1536
    """)
    for m in range(3):
        k.I(f"buffer_load_dword {v(V_JUNK + 2 + m)}, {v(T + 3)}, {s(SP, 4)}, {s(S_T2)} offen")
        if m < 2:
            k.I(f"s_add_u32 {s(S_T2)}, {s(S_T2)}, {4 * 3072}")
    srd(k, SP, S_W1P, 512 * 512 * 2)
    k.I(f"""
    v_lshrrev_b32 {v(T + 3)}, 2, v0
    v_min_u32 {v(T + 3)}, 11, {v(T + 3)}
    v_add_u32 {v(T + 3)}, {s(S_T0)}, {v(T + 3)}
    v_lshlrev_b32 {v(T + 3)}, 10, {v(T + 3)}
    v_and_b32 {v(T + 4)}, 3, v0
    v_lshl_add_u32 {v(T + 3)}, {v(T + 4)}, 7, {v(T + 3)}
    s_lshl_b32 {s(S_T2)}, {s(S_T1)}, 9
    buffer_load_dword {v(V_JUNK + 5)}, {v(T + 3)}, {s(SP, 4)}, {s(S_T2)} offen
    """)
    k.L("K1_NOPF")


def compute(k):
    k.I(f"""
    s_lshr_b32 {s(S_WR)}, {s(S_WAVE)}, 1
    s_and_b32 {s(S_WC)}, {s(S_WAVE)}, 1
    s_lshl_b32 {s(S_T0)}, {s(S_WR)}, 6
    s_lshl_b32 {s(S_T1)}, {s(S_WC)}, 1
    s_add_u32 {s(S_T2)}, {s(S_T1)}, 1
    """)
    if common.K1_PREFETCH:
        prefetch(k)
        k.I(f"""
        s_lshl_b32 {s(S_T0)}, {s(S_WR)}, 6
        s_lshl_b32 {s(S_T1)}, {s(S_WC)}, 1
        s_add_u32 {s(S_T2)}, {s(S_T1)}, 1
        """)
    frag_addr_setup(k, S_T0, [S_T1, S_T2], V_AX, V_AW)
    k.I(f"""
    s_cmp_eq_u32 {s(S_TYPE)}, 2
    s_cbranch_scc1 K1_VTYPE
    """)
    mainloop(k, True)
    k.I("s_waitcnt vmcnt(0)")
    k.I(f"""
    s_cmp_eq_u32 {s(S_TYPE)}, 3
    s_cbranch_scc1 K1_EPI_H
    """)
    k.I(f"""
    s_and_b32 {s(S_T0)}, {s(S_CB)}, 3
    s_lshl_b32 {s(S_T0)}, {s(S_T0)}, 3
    s_lshl_b32 {s(S_T1)}, {s(S_WC)}, 2
    s_add_u32 {s(S_T0)}, {s(S_T0)}, {s(S_T1)}
    s_lshl_b32 {s(S_T0)}, {s(S_T0)}, 6
    s_lshl_b32 {s(S_T1)}, {s(S_RB)}, 2
    s_add_u32 {s(S_T0)}, {s(S_T0)}, {s(S_T1)}
    s_lshl_b32 {s(S_T1)}, {s(S_WR)}, 1
    s_add_u32 {s(S_OB)}, {s(S_T0)}, {s(S_T1)}
    v_lshlrev_b32 v1, 4, v0
    s_cmp_eq_u32 {s(S_TYPE)}, 0
    s_cbranch_scc0 K1_EPI_K
    """)
    srd(k, S_O, S_WS, 2 << 20, QF)
    k.I(f"""
    s_lshl_b32 {s(S_OB)}, {s(S_OB)}, 10
    s_mov_b32 {s(S_C1)}, {hx(f2u(QSCALE))}
    s_mov_b32 {s(S_C1 + 1)}, {hx(f2u(QSCALE))}
    """)
    k.nop(4)
    n = 0
    for ct in range(2):
        for rt in range(2):
            for hf in range(2):
                A = acc(ct, rt) + 8 * hf
                T = V_T + 8 * (n & 1)
                for i in range(4):
                    k.I(f"v_pk_mul_f32 {v(A + 2 * i, 2)}, {v(A + 2 * i, 2)}, {s(S_C1, 2)}")
                for i in range(4):
                    k.I(f"v_cvt_pk_bf16_f32 {v(T + i)}, {v(A + 2 * i)}, {v(A + 2 * i + 1)}")
                k.I(f"s_add_u32 {s(S_T0)}, {s(S_OB)}, {((2 * ct + hf) * 64 + rt) * 1024}")
                k.I(f"buffer_store_dwordx4 {v(T, 4)}, v1, {s(S_O, 4)}, {s(S_T0)} offen {common.K1_STORE_MODS}")
                n += 1
    stamp_flush(k, 4, S_WS, S_WAVE, 0)
    k.I("s_endpgm")
    k.L("K1_EPI_K")
    srd(k, S_O, S_WS, 4 << 20, KVF)
    k.I(f"s_lshl_b32 {s(S_OB)}, {s(S_OB)}, 11")
    k.nop(4)
    n = 0
    for ct in range(2):
        for rt in range(2):
            for hf in range(2):
                A = acc(ct, rt) + 8 * hf
                T = V_T + 8 * (n & 1)
                for i in range(4):
                    k.I(f"v_cvt_pk_bf16_f32 {v(T + i)}, {v(A + 2 * i)}, {v(A + 2 * i + 1)}")
                k.I(f"s_add_u32 {s(S_T0)}, {s(S_OB)}, {((2 * ct + hf) * 64 + rt) * 2048}")
                k.I(f"buffer_store_dwordx4 {v(T, 4)}, v1, {s(S_O, 4)}, {s(S_T0)} offen {common.K1_STORE_MODS}")
                n += 1
    stamp_flush(k, 4, S_WS, S_WAVE, 0)
    k.I("s_endpgm")

    k.L("K1_VTYPE")
    mainloop(k, False)
    k.I("s_waitcnt vmcnt(0)")
    srd(k, S_O, S_WS, 4 << 20, KVF)
    k.I(f"""
    s_and_b32 {s(S_T0)}, {s(S_CB)}, 3
    s_lshl_b32 {s(S_T0)}, {s(S_T0)}, 3
    s_lshl_b32 {s(S_T1)}, {s(S_WC)}, 2
    s_add_u32 {s(S_T0)}, {s(S_T0)}, {s(S_T1)}
    s_lshl_b32 {s(S_T0)}, {s(S_T0)}, 6
    s_lshl_b32 {s(S_T1)}, {s(S_RB)}, 2
    s_add_u32 {s(S_T0)}, {s(S_T0)}, {s(S_T1)}
    s_lshl_b32 {s(S_T1)}, {s(S_WR)}, 1
    s_add_u32 {s(S_OB)}, {s(S_T0)}, {s(S_T1)}
    s_lshl_b32 {s(S_OB)}, {s(S_OB)}, 11
    v_bfe_u32 v1, v0, 4, 1
    v_lshlrev_b32 v1, 17, v1
    v_lshl_add_u32 v1, {v(V_H)}, 8, v1
    v_and_b32 {v(V_T)}, 15, v0
    v_lshl_add_u32 v1, {v(V_T)}, 4, v1
    v_add_u32 v1, 1024, v1
    """)
    n = 0
    for ct in range(2):
        for rt in range(2):
            for st in range(2):
                A = acc(ct, rt) + 8 * st
                T = V_T + 8 * (n & 1)
                for i in range(4):
                    k.I(f"v_cvt_pk_bf16_f32 {v(T + i)}, {v(A + 2 * i)}, {v(A + 2 * i + 1)}")
                k.I(f"s_add_u32 {s(S_T0)}, {s(S_OB)}, {(2 * ct * 64 + rt) * 2048}")
                k.I(f"buffer_store_dwordx4 {v(T, 4)}, v1, {s(S_O, 4)}, {s(S_T0)} offen offset:{st * 512} {common.K1_STORE_MODS}")
                n += 1
    stamp_flush(k, 4, S_WS, S_WAVE, 0)
    k.I("s_endpgm")

    k.L("K1_EPI_H")
    V_MU = 16
    V_CSV = 20
    V_RO = 36
    V_C0 = 40
    T = V_T
    srd(k, S_O, S_WS, 2 << 20, HSF)
    k.I("s_barrier")
    k.I(f"""
    s_lshl_b32 {s(S_T0)}, {s(S_WR)}, 6
    v_add_u32 {v(T)}, {s(S_T0)}, {v(V_L31)}
    v_lshlrev_b32 {v(T + 1)}, 3, {v(T)}
    v_add_u32 {v(T + 1)}, {L_STAT}, {v(T + 1)}
    ds_read_b64 {v(V_MU, 2)}, {v(T + 1)}
    ds_read_b64 {v(V_MU + 2, 2)}, {v(T + 1)} offset:256
    s_lshl_b32 {s(S_T1)}, {s(S_WC)}, 8
    s_add_u32 {s(S_T1)}, {s(S_T1)}, {L_CSUM}
    v_lshlrev_b32 {v(T + 2)}, 4, {v(V_H)}
    v_add_u32 {v(T + 2)}, {s(S_T1)}, {v(T + 2)}
    v_mov_b32 {v(V_C0)}, {hx(f2u(GELU_C0))}
    v_mov_b32 {v(V_C0 + 1)}, {hx(f2u(GELU_C0))}
    s_mov_b32 {s(S_C1)}, {hx(f2u(GELU_C1))}
    s_mov_b32 {s(S_C1 + 1)}, {hx(f2u(GELU_C1))}
    """)
    k.I(f"""
    s_sub_u32 {s(S_T1)}, {s(S_CB)}, 12
    s_lshr_b32 {s(S_T2)}, {s(S_T1)}, 1
    s_add_u32 {s(S_T2)}, {s(S_T2)}, 1
    s_sub_u32 {s(S_T0)}, 0, {s(S_T2)}
    s_bitcmp1_b32 {s(S_T1)}, 0
    s_cselect_b32 {s(S_T2)}, {s(S_T0)}, {s(S_T2)}
    s_lshl_b32 {s(S_T0)}, {s(S_RB)}, 7
    s_add_u32 {s(S_T0)}, {s(S_T0)}, {s(S_T2)}
    s_lshl_b32 {s(S_T1)}, {s(S_T1)}, 3
    s_lshl_b32 {s(S_T2)}, {s(S_WC)}, 2
    s_add_u32 {s(S_T1)}, {s(S_T1)}, {s(S_T2)}
    s_lshl_b32 {s(S_OB)}, {s(S_T1)}, 10
    v_add_u32 {v(T)}, {s(S_T0)}, {v(T)}
    """)
    S_ZM = 54
    for rt in range(2):
        r = T + 3
        k.I(f"""
        v_add_u32 {v(r)}, {32 * rt}, {v(T)}
        v_cmp_gt_u32 vcc, 0x800, {v(r)}
        s_mov_b64 {s(S_ZM + 2 * rt, 2)}, vcc
        v_and_b32 {v(r)}, 0x7ff, {v(r)}
        v_lshrrev_b32 {v(r + 1)}, 5, {v(r)}
        v_lshlrev_b32 {v(r + 1)}, 15, {v(r + 1)}
        v_and_b32 {v(r)}, 31, {v(r)}
        v_lshl_add_u32 {v(r)}, {v(V_H)}, 5, {v(r)}
        v_lshl_add_u32 {v(V_RO + rt)}, {v(r)}, 4, {v(r + 1)}
        """)
    n = 0
    for ct in range(2):
        for q in range(4):
            k.I(f"ds_read_b128 {v(V_CSV + 4 * q, 4)}, {v(T + 2)} offset:{ct * 128 + q * 32}")
        k.I("s_waitcnt lgkmcnt(0)")
        for rt in range(2):
            A = acc(ct, rt)
            mu = V_MU + 2 * rt
            for i in range(8):
                k.I(f"v_pk_fma_f32 {v(A + 2 * i, 2)}, {v(mu, 2)}, {v(V_CSV + 2 * i, 2)}, {v(A + 2 * i, 2)} op_sel_hi:[0,1,1] neg_lo:[1,0,0] neg_hi:[1,0,0]")
            for i in range(8):
                k.I(f"v_pk_mul_f32 {v(A + 2 * i, 2)}, {v(A + 2 * i, 2)}, {v(mu, 2)} op_sel:[0,1] op_sel_hi:[1,1]")
            gelu_pairs(k, [A + 2 * i for i in range(8)], V_T + 8, V_C0, S_C1)
            for hf in range(2):
                TT = V_T + 24 + 4 * (n & 1)
                for i in range(4):
                    k.I(f"v_cvt_pk_bf16_f32 {v(TT + i)}, {v(A + 8 * hf + 2 * i)}, {v(A + 8 * hf + 2 * i + 1)}")
                for i in range(4):
                    k.I(f"v_cndmask_b32 {v(TT + i)}, 0, {v(TT + i)}, {s(S_ZM + 2 * rt, 2)}")
                k.I(f"s_add_u32 {s(S_T0)}, {s(S_OB)}, {(2 * ct + hf) * 1024}")
                k.I(f"buffer_store_dwordx4 {v(TT, 4)}, {v(V_RO + rt)}, {s(S_O, 4)}, {s(S_T0)} offen {common.K1_STORE_MODS}")
                n += 1
    stamp_flush(k, 4, S_WS, S_WAVE, 0)
    k.I("s_endpgm")


def stats_wave(k):
    k.L("K1_STATS")
    k.I(f"""
    s_cmp_lg_u32 s2, 0
    s_cbranch_scc1 K1_NOZERO
    s_cmp_lg_u32 {s(S_WAVE)}, 8
    s_cbranch_scc1 K1_NOZERO
    """)
    srd(k, S_GO, S_WS, NFLAGS * 128, FLAGS)
    k.I(f"""
    v_lshlrev_b32 v1, 7, v0
    v_mov_b32 v2, 0
    buffer_store_dword v2, v1, {s(S_GO, 4)}, 0 offen sc1
    v_add_u32 v1, 8192, v1
    buffer_store_dword v2, v1, {s(S_GO, 4)}, 0 offen sc1
    """)
    k.L("K1_NOZERO")
    k.I(f"""
    s_cmp_eq_u32 {s(S_TYPE)}, 3
    s_cbranch_scc0 K1_TRANS
    s_sub_u32 {s(S_LW)}, {s(S_WAVE)}, 8
    s_lshl_b32 {s(S_T1)}, {s(S_LW)}, 5
    """)
    AX, AW = 8, 16
    FX, FW, FG = 20, 28, 36
    SX, SQ, GD, CS, ONES = 44, 45, 46, 47, 48
    V_GA = 49
    frag_addr_setup(k, S_T1, [S_LW], AX, AW)
    k.I(f"""
    v_mov_b32 {v(SX)}, 0
    v_mov_b32 {v(SQ)}, 0
    v_mov_b32 {v(GD)}, 0
    v_mov_b32 {v(CS)}, 0
    v_mov_b32 {v(ONES)}, 0x3f803f80
    v_lshlrev_b32 {v(V_GA)}, 4, {v(V_H)}
    v_add_u32 {v(V_GA)}, {L_GATE}, {v(V_GA)}
    """)

    def sreads(j):
        st, sidx = j // 4, j % 4
        slot = st % 4
        hi = slot // 2
        so = (slot % 2) * SLOT
        b = j & 1
        k.I(f"ds_read_b128 {v(FX + 4 * b, 4)}, {v(AX + 4 * hi + sidx)} offset:{so}")
        k.I(f"ds_read_b64_tr_b16 {v(FW + 4 * b, 2)}, {v(AW + hi)} offset:{so + sidx * 4096}")
        k.I(f"ds_read_b64_tr_b16 {v(FW + 4 * b + 2, 2)}, {v(AW + hi)} offset:{so + sidx * 4096 + 1024}")
        k.I(f"ds_read_b128 {v(FG + 4 * b, 4)}, {v(V_GA)} offset:{j * 32}")

    for st in range(8):
        k.I("s_barrier")
        sreads(4 * st)
        for sidx in range(4):
            j = 4 * st + sidx
            b = j & 1
            if sidx < 3:
                sreads(j + 1)
                k.I("s_waitcnt lgkmcnt(4)")
            else:
                k.I("s_waitcnt lgkmcnt(0)")
            for i in range(4):
                k.I(f"v_dot2c_f32_bf16 {v(SX)}, {v(FX + 4 * b + i)}, {v(ONES)}")
                k.I(f"v_dot2c_f32_bf16 {v(SQ)}, {v(FX + 4 * b + i)}, {v(FX + 4 * b + i)}")
                k.I(f"v_dot2c_f32_bf16 {v(GD)}, {v(FX + 4 * b + i)}, {v(FG + 4 * b + i)}")
                k.I(f"v_dot2c_f32_bf16 {v(CS)}, {v(FW + 4 * b + i)}, {v(ONES)}")
    k.nop(3)
    T = 52
    for r in (SX, SQ, GD, CS):
        sum_halves(k, r, T)
    srd(k, S_GO, S_WS, 8192, GOFF)
    k.I(f"""
    v_mul_f32 {v(SX)}, {hx(f2u(1.0 / 512))}, {v(SX)}
    v_mul_f32 {v(SQ)}, {hx(f2u(1.0 / 512))}, {v(SQ)}
    v_fma_f32 {v(SQ)}, -{v(SX)}, {v(SX)}, {v(SQ)}
    v_max_f32 {v(SQ)}, 0, {v(SQ)}
    v_add_f32 {v(SQ)}, {hx(f2u(1e-5))}, {v(SQ)}
    v_rsq_f32 {v(SQ)}, {v(SQ)}
    v_mul_f32 {v(GD)}, {hx(f2u(-LOG2E))}, {v(GD)}
    v_exp_f32 {v(GD)}, {v(GD)}
    s_lshl_b32 {s(S_T1)}, {s(S_LW)}, 5
    v_add_u32 {v(T)}, {s(S_T1)}, {v(V_L31)}
    v_add_f32 {v(GD)}, 1.0, {v(GD)}
    v_rcp_f32 {v(GD)}, {v(GD)}
    v_lshlrev_b32 {v(T + 1)}, 3, {v(T)}
    v_lshlrev_b32 {v(T + 2)}, 2, {v(T)}
    v_add_u32 {v(T + 1)}, {L_STAT}, {v(T + 1)}
    v_add_u32 {v(T + 3)}, {L_CSUM}, {v(T + 2)}
    s_lshl_b32 {s(S_T0)}, {s(S_RB)}, 9
    s_mov_b32 exec_hi, 0
    ds_write_b64 {v(T + 1)}, {v(SX, 2)}
    ds_write_b32 {v(T + 3)}, {v(CS)}
    buffer_store_dword {v(GD)}, {v(T + 2)}, {s(S_GO, 4)}, {s(S_T0)} offen
    s_mov_b64 exec, -1
    s_waitcnt lgkmcnt(0)
    s_barrier
    s_endpgm
    """)


def loader(k):
    V_VX, V_VW = 4, 5
    k.L("K1_LOADER")
    k.I(f"""
    s_sub_u32 {s(S_LW)}, {s(S_WAVE)}, 4
    s_lshl_b32 {s(S_LDSW)}, {s(S_LW)}, 10
    s_lshl_b32 {s(S_XB)}, {s(S_RB)}, 17
    v_lshrrev_b32 v1, 3, v0
    v_lshlrev_b32 {v(V_VX)}, 10, v1
    v_lshrrev_b32 v1, 4, v0
    s_and_b32 {s(S_T0)}, {s(S_LW)}, 1
    s_lshl_b32 {s(S_T0)}, {s(S_T0)}, 2
    v_add_u32 v2, {s(S_T0)}, v1
    v_and_b32 v3, 7, v0
    v_xor_b32 v2, v2, v3
    v_lshl_add_u32 {v(V_VX)}, v2, 4, {v(V_VX)}
    s_lshl_b32 {s(S_T0)}, {s(S_LW)}, 13
    v_add_u32 {v(V_VX)}, {s(S_T0)}, {v(V_VX)}
    v_mul_lo_u32 {v(V_VW)}, v1, {s(S_RS)}
    v_lshlrev_b32 v2, 2, v1
    v_and_b32 v3, 15, v0
    v_xor_b32 v2, v2, v3
    v_lshl_add_u32 {v(V_VW)}, v2, 4, {v(V_VW)}
    s_mul_i32 {s(S_T0)}, {s(S_LW)}, {s(S_RS)}
    s_lshl_b32 {s(S_T0)}, {s(S_T0)}, 2
    v_add_u32 {v(V_VW)}, {s(S_T0)}, {v(V_VW)}
    """)

    def issue(st):
        slot = (st % 4) * SLOT
        for m in range(4):
            k.I(f"""
            s_add_u32 m0, {s(S_LDSW)}, {slot + m * 4096}
            s_add_u32 {s(S_T0)}, {s(S_XB)}, {m * 32768 + st * 128}
            buffer_load_dwordx4 {v(V_VX)}, {s(S_X, 4)}, {s(S_T0)} offen lds
            s_add_u32 m0, {s(S_LDSW)}, {slot + 16384 + m * 4096}
            s_nop 0
            buffer_load_dwordx4 {v(V_VW)}, {s(S_W, 4)}, {s(S_WCUR)} offen lds
            s_add_u32 {s(S_WCUR)}, {s(S_WCUR)}, {s(S_RS16)}
            """)

    def loader_loop(work):
        issue(0)
        issue(1)
        stamp(k, 1)
        issued = 1
        for st in range(8):
            k.I(f"s_waitcnt vmcnt({8 * (issued - st)})")
            if st == 0: stamp(k, 2)
            if st == 4: stamp(k, 3)
            k.I("s_barrier")
            if st == 0:
                issue(2)
                issue(3)
                issued = 3
            elif st + 3 <= 7:
                issue(st + 3)
                issued = st + 3
            work(st)

    k.I(f"""
    s_cmp_eq_u32 {s(S_TYPE)}, 3
    s_cbranch_scc1 K1_LOADER_H
    """)
    CSB = 8
    S_JOB = S_OB
    k.I(f"""
    s_sub_u32 {s(S_JOB)}, s2, 64
    s_cmp_eq_u32 {s(S_LW)}, 0
    s_cselect_b32 {s(S_JOB)}, {s(S_JOB)}, 99
    s_cmp_ge_u32 {s(S_JOB)}, 43
    s_cbranch_scc1 K1_NOCS_A
    s_load_dwordx2 {s(S_GP, 2)}, s[0:1], {KA_W3}
    v_lshrrev_b32 v1, 2, v0
    s_mov_b32 {s(S_T0)}, 2752
    v_mul_lo_u32 v1, v1, {s(S_T0)}
    v_and_b32 v2, 3, v0
    v_lshl_add_u32 v1, v2, 4, v1
    s_lshl_b32 {s(S_T1)}, {s(S_JOB)}, 6
    s_waitcnt lgkmcnt(0)
    """)
    srd(k, S_GW, S_GP, 512 * 1376 * 2)
    for i in range(32):
        k.I(f"buffer_load_dwordx4 {v(CSB + 4 * i, 4)}, v1, {s(S_GW, 4)}, {s(S_T1)} offen")
        k.I(f"s_add_u32 {s(S_T1)}, {s(S_T1)}, {16 * 2752}")
    k.L("K1_NOCS_A")
    loader_loop(lambda st: None)
    k.I(f"""
    s_cmp_ge_u32 {s(S_JOB)}, 43
    s_cbranch_scc1 K1_NOCS_B
    """)
    ACC = 136
    k.I("v_mov_b32 v2, 0x00003f80")
    k.I("v_mov_b32 v3, 0x3f800000")
    for i in range(8):
        k.I(f"v_mov_b32 {v(ACC + i)}, 0")
    for i in range(32):
        for d in range(4):
            k.I(f"v_dot2c_f32_bf16 {v(ACC + 2 * d)}, {v(CSB + 4 * i + d)}, v2")
            k.I(f"v_dot2c_f32_bf16 {v(ACC + 2 * d + 1)}, {v(CSB + 4 * i + d)}, v3")
    k.nop(3)
    for rot in (4, 8):
        for i in range(8):
            k.I(f"v_add_f32_dpp {v(ACC + i)}, {v(ACC + i)}, {v(ACC + i)} row_ror:{rot} row_mask:0xf bank_mask:0xf")
        k.nop(2)
    for i in range(8):
        k.I(f"v_mov_b32 {v(CSB + i)}, {v(ACC + i)}")
    k.nop(2)
    for i in range(8):
        k.I(f"v_permlane16_swap_b32 {v(CSB + i)}, {v(ACC + i)}")
    for i in range(8):
        k.I(f"v_add_f32 {v(ACC + i)}, {v(ACC + i)}, {v(CSB + i)}")
    for i in range(8):
        k.I(f"v_mov_b32 {v(CSB + i)}, {v(ACC + i)}")
    k.nop(2)
    for i in range(8):
        k.I(f"v_permlane32_swap_b32 {v(CSB + i)}, {v(ACC + i)}")
    for i in range(8):
        k.I(f"v_add_f32 {v(ACC + i)}, {v(ACC + i)}, {v(CSB + i)}")
    srd(k, S_GO, S_WS, 1376 * 4, CS3)
    k.I(f"""
    v_lshlrev_b32 v1, 5, v0
    s_lshl_b32 {s(S_T0)}, {s(S_JOB)}, 7
    s_mov_b64 exec, 15
    buffer_store_dwordx4 {v(ACC, 4)}, v1, {s(S_GO, 4)}, {s(S_T0)} offen
    buffer_store_dwordx4 {v(ACC + 4, 4)}, v1, {s(S_GO, 4)}, {s(S_T0)} offen offset:16
    s_mov_b64 exec, -1
    """)
    k.L("K1_NOCS_B")
    stamp_flush(k, 4, S_WS, S_WAVE, 0)
    k.I("s_endpgm")

    k.L("K1_LOADER_H")
    srd(k, S_GW, S_GP, 1024)
    k.I(f"""
    v_lshlrev_b32 v1, 4, v0
    s_mov_b32 m0, {L_GATE}
    s_nop 0
    buffer_load_dwordx4 v1, {s(S_GW, 4)}, 0 offen lds
    """)
    loader_loop(lambda st: None)
    k.I("s_barrier")
    stamp_flush(k, 4, S_WS, S_WAVE, 0)
    k.I("s_endpgm")


def transposer(k):
    k.L("K1_TRANS")
    P2, PO, P3, P4 = 56, 58, 60, 62
    S_U, S_REL, S_SZ, S_RSX, S_SO, S_DO = 64, 65, 66, 67, 43, 44
    SR = 20
    DR = 24
    k.I(f"""
    s_load_dwordx2 {s(P2, 2)}, s[0:1], {KA_W2}
    s_load_dwordx4 {s(P3, 4)}, s[0:1], {KA_W3}
    s_load_dwordx2 {s(PO, 2)}, s[0:1], {KA_WO}
    s_sub_u32 {s(S_LW)}, {s(S_WAVE)}, 8
    s_sub_u32 {s(S_U)}, s2, 64
    s_lshl_b32 {s(S_U)}, {s(S_U)}, 2
    s_add_u32 {s(S_U)}, {s(S_U)}, {s(S_LW)}
    s_mul_i32 {s(S_LDSW)}, {s(S_LW)}, 5120
    s_add_u32 {s(S_LDSW)}, {s(S_LDSW)}, {L_TR}
    v_lshrrev_b32 v1, 2, v0
    v_and_b32 v2, 3, v0
    v_lshlrev_b32 v2, 4, v2
    s_waitcnt lgkmcnt(0)
    """)
    for st in range(common.TR_ISSUE_AFTER):
        k.I("s_barrier")
    for i in range(5):
        k.I(f"""
        s_mov_b32 {s(SR)}, {s(P2)}
        s_mov_b32 {s(SR + 1)}, {s(P2 + 1)}
        s_mov_b32 {s(SR + 2)}, {hx(512 * 512 * 2)}
        s_mov_b32 {s(S_RSX)}, 1024
        s_mov_b32 {s(S_REL)}, {s(S_U)}
        s_cmp_ge_u32 {s(S_U)}, {U_W3}
        s_cselect_b32 {s(SR)}, {s(P3)}, {s(SR)}
        s_cselect_b32 {s(SR + 1)}, {s(P3 + 1)}, {s(SR + 1)}
        s_cselect_b32 {s(SR + 2)}, {hx(512 * 1376 * 2)}, {s(SR + 2)}
        s_cselect_b32 {s(S_RSX)}, 2752, {s(S_RSX)}
        s_cselect_b32 {s(S_T0)}, {U_W3}, 0
        s_cmp_ge_u32 {s(S_U)}, {U_W4}
        s_cselect_b32 {s(SR)}, {s(P4)}, {s(SR)}
        s_cselect_b32 {s(SR + 1)}, {s(P4 + 1)}, {s(SR + 1)}
        s_cselect_b32 {s(S_RSX)}, 1024, {s(S_RSX)}
        s_cselect_b32 {s(S_T0)}, {U_W4}, {s(S_T0)}
        s_cmp_ge_u32 {s(S_U)}, {U_WO}
        s_cselect_b32 {s(SR)}, {s(PO)}, {s(SR)}
        s_cselect_b32 {s(SR + 1)}, {s(PO + 1)}, {s(SR + 1)}
        s_cselect_b32 {s(SR + 2)}, {hx(512 * 512 * 2)}, {s(SR + 2)}
        s_cselect_b32 {s(S_T0)}, {U_WO}, {s(S_T0)}
        s_mov_b32 {s(SR + 3)}, {hx(SRD3)}
        s_sub_u32 {s(S_REL)}, {s(S_U)}, {s(S_T0)}
        s_lshr_b32 {s(S_T1)}, {s(S_REL)}, 5
        s_and_b32 {s(S_T2)}, {s(S_REL)}, 31
        s_cmp_eq_u32 {s(S_T0)}, {U_W4}
        s_cbranch_scc0 K1_TR_N{i}
        s_and_b32 {s(S_T1)}, {s(S_REL)}, 15
        s_lshr_b32 {s(S_T2)}, {s(S_REL)}, 4
        """)
        k.L(f"K1_TR_N{i}")
        k.I(f"""
        s_mul_i32 {s(S_SO)}, {s(S_T2)}, {s(S_RSX)}
        s_lshl_b32 {s(S_SO)}, {s(S_SO)}, 4
        s_lshl_b32 {s(S_T1)}, {s(S_T1)}, 6
        s_add_u32 {s(S_SO)}, {s(S_SO)}, {s(S_T1)}
        v_mul_lo_u32 v3, v1, {s(S_RSX)}
        v_add_u32 v3, v3, v2
        s_add_u32 m0, {s(S_LDSW)}, {i * 1024}
        s_nop 0
        buffer_load_dwordx4 v3, {s(SR, 4)}, {s(S_SO)} offen lds
        s_add_u32 {s(S_U)}, {s(S_U)}, 768
        """)
    for st in range(common.TR_ISSUE_AFTER, common.TR_WAIT_AFTER):
        k.I("s_barrier")
    srd(k, DR, S_WS, U_END * 1024, WT)
    k.I(f"""
    v_bfe_u32 v4, v0, 2, 2
    v_lshrrev_b32 v5, 5, v0
    v_lshl_add_u32 v4, v5, 2, v4
    v_lshlrev_b32 v4, 6, v4
    v_bfe_u32 v5, v0, 4, 1
    v_lshl_add_u32 v4, v5, 5, v4
    v_and_b32 v5, 3, v0
    v_lshl_add_u32 v4, v5, 3, v4
    v_add_u32 v4, {s(S_LDSW)}, v4
    v_lshlrev_b32 v5, 4, v0
    s_sub_u32 {s(S_U)}, {s(S_U)}, {5 * 768}
    s_lshl_b32 {s(S_DO)}, {s(S_U)}, 10
    s_waitcnt vmcnt(0)
    """)
    for i in range(5):
        k.I(f"ds_read_b64_tr_b16 {v(8 + 4 * i, 2)}, v4 offset:{i * 1024}")
        k.I(f"ds_read_b64_tr_b16 {v(8 + 4 * i + 2, 2)}, v4 offset:{i * 1024 + 512}")
    k.I("s_waitcnt lgkmcnt(0)")
    for i in range(5):
        k.I(f"buffer_store_dwordx4 {v(8 + 4 * i, 4)}, v5, {s(DR, 4)}, {s(S_DO)} offen {common.K1_STORE_MODS}")
        if i < 4:
            k.I(f"s_add_u32 {s(S_DO)}, {s(S_DO)}, {768 * 1024}")
    for st in range(common.TR_WAIT_AFTER, 8):
        k.I("s_barrier")
    k.I("s_endpgm")


VGPRS = 168
BLOCK = 768

if __name__ == "__main__":
    k = gen()
    errs = check_kernel(k.text(), NAME, takes=[{}, {"K1_DEC_H": True, "K1_HTYPE": True}, {"K1_EPI_K": True}, {"K1_VTYPE": True},
                                               {"K1_LOADER": True}, {"K1_LOADER": True, "K1_LOADER_H": True}])
    for e in errs:
        print(e)
    print(len(k.lines), "lines", len(errs), "errors")
```

```python
from common import *
import common
import attn
import roleb2 as B

NAME = "k2_kernel"
BLOCK = 256
LDS_BYTES = 81920
VGPRS = 256


def gen():
    k = Asm()
    kernel_header(k, NAME)
    k.I("""
    s_cmp_ge_u32 s2, 512
    s_cbranch_scc1 K2_END
    s_cmp_ge_u32 s2, 256
    s_cbranch_scc1 K2_B
    """)
    if common.A_PRIO:
        k.I(f"s_setprio {common.A_PRIO}")
    attn.gen_role(k)
    signal(k, attn.S_WS, attn.S_JB, F_O, attn.S_WAVE, attn.S_EX, attn.V_T)
    stamp_flush(k, 10, attn.S_WS, attn.S_WAVE, 1)
    k.I("s_endpgm")
    attn.gen_slow(k)
    k.L("K2_B")
    k.I("s_sub_u32 s2, s2, 256")
    k.I(f"s_setprio {common.B_PRIO}")
    B.prologue(k)
    stamp(k, 0)
    if "noB" in common.K2X:
        k.I("s_endpgm")
    B.stage_w2(k)
    stamp(k, 1)
    signal(k, B.S_WS, B.S_G, F_X1, B.S_WAVE, B.S_EX, 6)
    B.stage_w3(k, lambda kk: (wait_flag(kk, B.S_WS, B.S_G, F_X1, 8, B.S_WAVE, B.S_EX, 6), stamp(kk, 2)), "sc1")
    stamp(k, 3)
    signal(k, B.S_WS, B.S_G, F_PT, B.S_WAVE, B.S_EX, 6)
    B.stage_w4(k, lambda kk: (wait_flag(kk, B.S_WS, B.S_G, F_PT, 8, B.S_WAVE, B.S_EX, 6), stamp(kk, 4)), "sc1")
    stamp(k, 5)

    def o_wait(kk):
        kk.I(f"s_lshr_b32 {s(B.S_N)}, {s(B.S_G)}, 2")
        stamp(kk, 6)
        wait_flag(kk, B.S_WS, B.S_N, F_O, 32, B.S_WAVE, B.S_EX, 6)
        stamp(kk, 7)

    B.stage_o(k, o_wait, "sc1")
    if common.PROF_ON:
        k.I("s_add_u32 s2, s2, 256")
    stamp_flush(k, 8, B.S_WS, B.S_WAVE, 1)
    k.L("K2_END")
    k.I("s_endpgm")
    X = common.K2X
    if X & {"nomfma", "novmem", "nods", "novalu"}:
        i0 = k.lines.index("K2_B:")
        out = k.lines[:i0]
        for ln in k.lines[i0:]:
            t = ln.strip()
            if "nomfma" in X and t.startswith("v_mfma"):
                continue
            if "novmem" in X and t.startswith("buffer_load_dwordx4"):
                continue
            if "nods" in X and t.startswith("ds_"):
                continue
            if "novalu" in X and (t.startswith("v_pk_") or t.startswith("v_exp") or t.startswith("v_rcp") or t.startswith("v_cvt_pk") or t.startswith("v_swap")):
                continue
            out.append(ln)
        k.lines = out
    return k
```

```python
from common import *
import common

BLOCK = 256
LDS_BYTES = 81920

S_A, S_W, S_O, S_X, S_U = 8, 12, 16, 20, 24
S_WS = 28
S_G, S_C, S_WAVE = 30, 31, 32
S_RT, S_KH = 33, 34
S_T0, S_T1, S_T2, S_T3 = 35, 36, 37, 38
S_PX, S_POUT = 40, 42
S_C1 = 44
S_N, S_T0F = 46, 47
S_AB, S_WB0, S_WB1 = 48, 49, 50
S_EX = 52
S_H0, S_H1 = 54, 55

V_L16, V_L31, V_H = 1, 2, 3
V_KEEP = 240
V_G = 238
V_ROW = 237
V_RED = 236
V_T = 4
VGPRS = 256


def prio_loop(k):
    if common.B_LOOP_PRIO is not None:
        k.I(f"s_setprio {common.B_LOOP_PRIO}")


def prio_valu(k):
    if common.B_LOOP_PRIO is not None:
        k.I(f"s_setprio {common.B_PRIO}")


def prio_burst(k):
    if common.B_BURST_PRIO is not None:
        k.I(f"s_setprio {common.B_BURST_PRIO}")


def prologue(k):
    k.I(f"""
    s_load_dwordx2 {s(S_WS, 2)}, s[0:1], {KA_WS}
    s_load_dwordx2 {s(S_PX, 2)}, s[0:1], {KA_X}
    s_load_dwordx2 {s(S_POUT, 2)}, s[0:1], {KA_OUT}
    v_lshrrev_b32 v1, 6, v0
    v_and_b32 v0, 63, v0
    s_and_b32 {s(S_T0)}, s2, 7
    v_readfirstlane_b32 {s(S_WAVE)}, v1
    s_lshl_b32 {s(S_T0)}, {s(S_T0)}, 2
    s_bfe_u32 {s(S_T1)}, s2, 0x20006
    s_add_u32 {s(S_G)}, {s(S_T0)}, {s(S_T1)}
    s_bfe_u32 {s(S_C)}, s2, 0x30003
    v_lshlrev_b32 {v(V_L16)}, 4, v0
    v_and_b32 {v(V_L31)}, 31, v0
    v_lshrrev_b32 {v(V_H)}, 5, v0
    s_lshr_b32 {s(S_RT)}, {s(S_WAVE)}, 1
    s_and_b32 {s(S_KH)}, {s(S_WAVE)}, 1
    s_mul_i32 {s(S_T0F)}, {s(S_C)}, 6
    s_mul_i32 {s(S_T0)}, {s(S_C)}, 5
    s_add_u32 {s(S_T0)}, {s(S_T0)}, 3
    s_cmp_lt_u32 {s(S_C)}, 3
    s_cselect_b32 {s(S_T0F)}, {s(S_T0F)}, {s(S_T0)}
    s_cselect_b32 {s(S_N)}, 6, 5
    s_lshl_b32 {s(S_T0)}, {s(S_G)}, 1
    s_add_u32 {s(S_T0)}, {s(S_T0)}, {s(S_RT)}
    s_lshl_b32 {s(S_T0)}, {s(S_T0)}, 5
    v_add_u32 {v(V_ROW)}, {s(S_T0)}, {v(V_L31)}
    s_waitcnt lgkmcnt(0)
    """)
    srd(k, S_W, S_WS, U_END * 1024, WT)


V_A = 8
V_W = 72
V_ACC = 200
V_X = 128
L_RED = 65536


def s64_bases(k, unit0):
    k.I(f"""
    s_lshl_b32 {s(S_T0)}, {s(S_C)}, 6
    s_lshl_b32 {s(S_T1)}, {s(S_KH)}, 4
    s_add_u32 {s(S_T0)}, {s(S_T0)}, {s(S_T1)}
    s_add_u32 {s(S_T0)}, {s(S_T0)}, {unit0}
    s_lshl_b32 {s(S_WB0)}, {s(S_T0)}, 10
    s_add_u32 {s(S_WB1)}, {s(S_WB0)}, {32 * 1024}
    s_lshl_b32 {s(S_T0)}, {s(S_G)}, 1
    s_add_u32 {s(S_T0)}, {s(S_T0)}, {s(S_RT)}
    s_lshl_b32 {s(S_T0)}, {s(S_T0)}, 5
    s_add_u32 {s(S_T0)}, {s(S_T0)}, {s(S_T1)}
    s_lshl_b32 {s(S_AB)}, {s(S_T0)}, 10
    """)


def s64_wload(k, i):
    if i and i % 4 == 0:
        k.I(f"s_add_u32 {s(S_WB0)}, {s(S_WB0)}, 4096")
        k.I(f"s_add_u32 {s(S_WB1)}, {s(S_WB1)}, 4096")
    for ct, sb in ((0, S_WB0), (1, S_WB1)):
        k.I(f"buffer_load_dwordx4 {v(V_W + 8 * i + 4 * ct, 4)}, {v(V_L16)}, {s(S_W, 4)}, {s(sb)} offen offset:{(i % 4) * 1024}")


def s64_aload(k, i, mods=""):
    if i and i % 4 == 0:
        k.I(f"s_add_u32 {s(S_AB)}, {s(S_AB)}, 4096")
    k.I(f"buffer_load_dwordx4 {v(V_A + 4 * i, 4)}, {v(V_L16)}, {s(S_A, 4)}, {s(S_AB)} offen offset:{(i % 4) * 1024} {mods}")


def s64_main(k, wait):
    prio_loop(k)
    for i in range(16):
        wait(i)
        for ct in range(2):
            c = "0" if i == 0 else v(V_ACC + 16 * ct, 16)
            k.I(f"v_mfma_f32_32x32x16_bf16 {v(V_ACC + 16 * ct, 16)}, {v(V_W + 8 * i + 4 * ct, 4)}, {v(V_A + 4 * i, 4)}, {c}")
    prio_valu(k)
    k.I(f"""
    s_lshl_b32 {s(S_T0)}, {s(S_WAVE)}, 12
    s_add_u32 {s(S_T0)}, {s(S_T0)}, {L_RED}
    v_add_u32 {v(V_RED)}, {s(S_T0)}, {v(V_L16)}
    """)
    k.nop(10)
    lab = k.uid("B_RED")
    k.I(f"""
    s_cmp_eq_u32 {s(S_KH)}, 0
    s_cbranch_scc1 {lab}
    """)
    for i in range(16):
        k.I(f"v_swap_b32 {v(V_ACC + i)}, {v(V_ACC + 16 + i)}")
    k.L(lab)
    for q in range(4):
        k.I(f"ds_write_b128 {v(V_RED)}, {v(V_ACC + 16 + 4 * q, 4)} offset:{q * 1024}")
    k.I(f"""
    s_waitcnt lgkmcnt(0)
    s_barrier
    v_xor_b32 {v(V_RED)}, 0x1000, {v(V_RED)}
    """)
    for q in range(4):
        k.I(f"ds_read_b128 {v(V_ACC + 16 + 4 * q, 4)}, {v(V_RED)} offset:{q * 1024}")
    k.I("s_waitcnt lgkmcnt(0)")
    for i in range(8):
        k.I(f"v_pk_add_f32 {v(V_ACC + 2 * i, 2)}, {v(V_ACC + 2 * i, 2)}, {v(V_ACC + 16 + 2 * i, 2)}")


def unpack8(k, dst, src):
    for i in range(4):
        k.I(f"v_lshlrev_b32 {v(dst + 2 * i)}, 16, {v(src + i)}")
        k.I(f"v_and_b32 {v(dst + 2 * i + 1)}, 0xffff0000, {v(src + i)}")


def stage_w2(k):
    mods = common.B_STORE_MODS
    VX = 228
    VX = 0
    XR = [232, 234, 4, 6]
    srd(k, S_A, S_WS, 2 << 20, HSF)
    srd(k, S_X, S_PX, 2048 * 512 * 2)
    s64_bases(k, U_W2)
    k.I(f"""
    s_lshl_b32 {s(S_T0)}, {s(S_C)}, 7
    s_lshl_b32 {s(S_T1)}, {s(S_KH)}, 6
    s_add_u32 {s(S_T0)}, {s(S_T0)}, {s(S_T1)}
    v_lshlrev_b32 {v(V_RED)}, 10, {v(V_ROW)}
    v_lshl_add_u32 {v(V_RED)}, {v(V_H)}, 3, {v(V_RED)}
    """)
    prio_burst(k)
    for i in range(4):
        k.I(f"buffer_load_dwordx2 {v(XR[i], 2)}, {v(V_RED)}, {s(S_X, 4)}, {s(S_T0)} offen offset:{i * 16}")
    for i in range(16):
        s64_aload(k, i)
        s64_wload(k, i)
    s64_main(k, lambda i: k.I(f"s_waitcnt vmcnt({48 - 3 * (i + 1)})"))
    X = V_A
    for i in range(4):
        k.I(f"v_lshlrev_b32 {v(X + 4 * i)}, 16, {v(XR[i])}")
        k.I(f"v_and_b32 {v(X + 4 * i + 1)}, 0xffff0000, {v(XR[i])}")
        k.I(f"v_lshlrev_b32 {v(X + 4 * i + 2)}, 16, {v(XR[i] + 1)}")
        k.I(f"v_and_b32 {v(X + 4 * i + 3)}, 0xffff0000, {v(XR[i] + 1)}")
    for i in range(8):
        k.I(f"v_pk_add_f32 {v(V_KEEP + 2 * i, 2)}, {v(V_ACC + 2 * i, 2)}, {v(X + 2 * i, 2)}")
    SX, SQ = 4, 5
    K_ = V_KEEP
    k.I(f"v_add_f32 {v(SX)}, {v(K_)}, {v(K_ + 1)}")
    k.I(f"v_mul_f32 {v(SQ)}, {v(K_)}, {v(K_)}")
    k.I(f"v_fmac_f32 {v(SQ)}, {v(K_ + 1)}, {v(K_ + 1)}")
    for i in range(2, 16):
        k.I(f"v_add_f32 {v(SX)}, {v(SX)}, {v(K_ + i)}")
        k.I(f"v_fmac_f32 {v(SQ)}, {v(K_ + i)}, {v(K_ + i)}")
    sum_halves(k, SX, 6)
    sum_halves(k, SQ, 6)
    srd(k, S_O, S_WS, 2 << 20, X1F)
    srd(k, S_U, S_WS, 2048 * 128, STOFF)
    k.I(f"""
    s_lshl_b32 {s(S_T0)}, {s(S_G)}, 1
    s_add_u32 {s(S_T0)}, {s(S_T0)}, {s(S_RT)}
    s_lshl_b32 {s(S_T0)}, {s(S_T0)}, 5
    s_lshl_b32 {s(S_T1)}, {s(S_C)}, 2
    s_add_u32 {s(S_T0)}, {s(S_T0)}, {s(S_T1)}
    s_lshl_b32 {s(S_T1)}, {s(S_KH)}, 1
    s_add_u32 {s(S_T0)}, {s(S_T0)}, {s(S_T1)}
    s_lshl_b32 {s(S_T0)}, {s(S_T0)}, 10
    s_lshl_b32 {s(S_T2)}, {s(S_C)}, 4
    s_lshl_b32 {s(S_T1)}, {s(S_KH)}, 3
    s_add_u32 {s(S_T2)}, {s(S_T2)}, {s(S_T1)}
    v_lshlrev_b32 {v(7)}, 7, {v(V_ROW)}
    """)
    for hf in range(2):
        for i in range(4):
            k.I(f"v_cvt_pk_bf16_f32 {v(X + 4 * hf + i)}, {v(K_ + 8 * hf + 2 * i)}, {v(K_ + 8 * hf + 2 * i + 1)}")
        k.I(f"buffer_store_dwordx4 {v(X + 4 * hf, 4)}, {v(V_L16)}, {s(S_O, 4)}, {s(S_T0)} offen offset:{hf * 1024} {mods}")
    k.I(f"""
    s_mov_b32 exec_hi, 0
    buffer_store_dwordx2 {v(SX, 2)}, {v(7)}, {s(S_U, 4)}, {s(S_T2)} offen {mods}
    s_mov_b64 exec, -1
    """)


D3 = 8
V3_ACC = 8
V3_FA = 56
V3_WR = 72
V3_CS = 136
V3_ST = 168
V3_MU = 200
V3_C0 = 204
V3_AA = 206
V3_G = 208


def stage_w3(k, pre_wait, act_mods):
    mods = common.B_STORE_MODS
    T = V_T
    k.I(f"""
    s_add_u32 {s(S_T0)}, {s(S_T0F)}, {s(S_WAVE)}
    s_lshl_b32 {s(S_T0)}, {s(S_T0)}, 5
    s_add_u32 {s(S_T0)}, {s(S_T0)}, {U_W3}
    s_lshl_b32 {s(S_WB0)}, {s(S_T0)}, 10
    s_add_u32 {s(S_T1)}, {s(S_RT)}, 4
    s_sub_u32 {s(S_T2)}, {s(S_N)}, 1
    s_min_u32 {s(S_T1)}, {s(S_T1)}, {s(S_T2)}
    s_add_u32 {s(S_T1)}, {s(S_T1)}, {s(S_T0F)}
    s_lshl_b32 {s(S_T3)}, {s(S_T1)}, 7
    s_lshl_b32 {s(S_T1)}, {s(S_T1)}, 5
    s_add_u32 {s(S_T1)}, {s(S_T1)}, {U_W3}
    s_lshl_b32 {s(S_WB1)}, {s(S_T1)}, 10
    """)

    def wload(ks):
        if ks and ks % 4 == 0:
            k.I(f"s_add_u32 {s(S_WB0)}, {s(S_WB0)}, 4096")
            k.I(f"s_add_u32 {s(S_WB1)}, {s(S_WB1)}, 4096")
        for i, sb in ((0, S_WB0), (1, S_WB1)):
            k.I(f"buffer_load_dwordx4 {v(V3_WR + 8 * (ks % D3) + 4 * i, 4)}, {v(V_L16)}, {s(S_W, 4)}, {s(sb)} offen offset:{(ks % 4) * 1024}")

    prio_burst(k)
    for ks in range(D3):
        wload(ks)
    prio_valu(k)
    srd(k, S_U, S_WS, 1376 * 4, CS3)
    k.I(f"""
    s_add_u32 {s(S_T0)}, {s(S_T0F)}, {s(S_WAVE)}
    s_lshl_b32 {s(S_T0)}, {s(S_T0)}, 7
    v_lshlrev_b32 {v(T)}, 4, {v(V_H)}
    """)
    for q in range(4):
        k.I(f"buffer_load_dwordx4 {v(V3_CS + 4 * q, 4)}, {v(T)}, {s(S_U, 4)}, {s(S_T0)} offen offset:{q * 32}")
    for q in range(4):
        k.I(f"buffer_load_dwordx4 {v(V3_CS + 16 + 4 * q, 4)}, {v(T)}, {s(S_U, 4)}, {s(S_T3)} offen offset:{q * 32}")
    k.I(f"""
    s_lshl_b32 {s(S_T0)}, {s(S_KH)}, 15
    v_add_u32 {v(V3_AA)}, {s(S_T0)}, {v(V_L16)}
    v_xor_b32 {v(V3_AA + 1)}, 0x8000, {v(V3_AA)}
    v_lshlrev_b32 {v(T + 1)}, 7, {v(V_L31)}
    v_lshl_add_u32 {v(T + 1)}, {v(V_H)}, 6, {v(T + 1)}
    """)
    srd(k, S_A, S_WS, 2 << 20, X1F)
    srd(k, S_X, S_WS, 2048 * 128, STOFF)
    pre_wait(k)
    prio_burst(k)
    k.I(f"""
    s_lshl_b32 {s(S_T0)}, {s(S_G)}, 16
    s_lshl_b32 {s(S_T1)}, {s(S_WAVE)}, 10
    s_add_u32 {s(S_T0)}, {s(S_T0)}, {s(S_T1)}
    """)
    for m in range(16):
        k.I(f"""
        s_add_u32 m0, {s(S_T1)}, {m * 4096}
        s_add_u32 {s(S_T2)}, {s(S_T0)}, {m * 4096}
        buffer_load_dwordx4 {v(V_L16)}, {s(S_A, 4)}, {s(S_T2)} offen {act_mods} lds
        """)
    k.I(f"""
    s_lshl_b32 {s(S_T0)}, {s(S_G)}, 13
    s_lshl_b32 {s(S_T1)}, {s(S_KH)}, 12
    s_add_u32 {s(S_T1)}, {s(S_T1)}, {s(S_T0)}
    s_xor_b32 {s(S_T2)}, {s(S_T1)}, 0x1000
    """)
    for rr, so in ((0, S_T1), (1, S_T2)):
        for q in range(4):
            k.I(f"buffer_load_dwordx4 {v(V3_ST + 16 * rr + 4 * q, 4)}, {v(T + 1)}, {s(S_X, 4)}, {s(so)} offen offset:{q * 16} {act_mods}")
    k.I("s_waitcnt vmcnt(8)")
    k.I("s_barrier")
    prio_loop(k)

    def reads(ks):
        b = ks & 1
        return [f"ds_read_b128 {v(V3_FA + 8 * b + 4 * i, 4)}, {v(V3_AA + i)} offset:{ks * 1024}" for i in range(2)]

    for t in reads(0):
        k.I(t)
    for ks in range(32):
        b = ks & 1
        W = V3_WR + 8 * (ks % D3)
        if ks >= D3:
            k.I(f"s_waitcnt vmcnt({2 * (min(31, ks + D3 - 1) - ks)}) lgkmcnt(0)")
        else:
            k.I("s_waitcnt lgkmcnt(0)")

        def mf(i, fw, fa):
            c = "0" if ks == 0 else v(V3_ACC + 16 * i, 16)
            k.I(f"v_mfma_f32_32x32x16_bf16 {v(V3_ACC + 16 * i, 16)}, {v(fw, 4)}, {v(fa, 4)}, {c}")

        mf(0, W, V3_FA + 8 * b)
        if ks + 1 < 32:
            for t in reads(ks + 1):
                k.I(t)
        mf(1, W, V3_FA + 8 * b + 4)
        mf(2, W + 4, V3_FA + 8 * b)
        if ks + D3 < 32:
            wload(ks + D3)
    prio_valu(k)
    for rr in range(2):
        B = V3_ST + 16 * rr
        for i in range(1, 8):
            k.I(f"v_pk_add_f32 {v(B, 2)}, {v(B, 2)}, {v(B + 2 * i, 2)}")
        sum_halves(k, B, T)
        sum_halves(k, B + 1, T)
        mu = V3_MU + 2 * rr
        k.I(f"""
        v_mul_f32 {v(mu)}, {hx(f2u(1.0 / 512))}, {v(B)}
        v_mul_f32 {v(mu + 1)}, {hx(f2u(1.0 / 512))}, {v(B + 1)}
        v_fma_f32 {v(mu + 1)}, -{v(mu)}, {v(mu)}, {v(mu + 1)}
        v_max_f32 {v(mu + 1)}, 0, {v(mu + 1)}
        v_add_f32 {v(mu + 1)}, {hx(f2u(1e-5))}, {v(mu + 1)}
        v_rsq_f32 {v(mu + 1)}, {v(mu + 1)}
        """)
    srd(k, S_O, S_WS, 64 * 86 * 1024, HIDF)
    k.I(f"""
    s_lshl_b32 {s(S_T0)}, {s(S_G)}, 1
    s_add_u32 {s(S_T1)}, {s(S_T0)}, {s(S_KH)}
    s_mul_i32 {s(S_H0)}, {s(S_T1)}, 86
    s_xor_b32 {s(S_T1)}, {s(S_T1)}, 1
    s_mul_i32 {s(S_H1)}, {s(S_T1)}, 86
    s_add_u32 {s(S_T0)}, {s(S_T0F)}, {s(S_WAVE)}
    s_lshl_b32 {s(S_T0)}, {s(S_T0)}, 1
    s_add_u32 {s(S_T2)}, {s(S_T0F)}, {s(S_RT)}
    s_add_u32 {s(S_T2)}, {s(S_T2)}, 4
    s_lshl_b32 {s(S_T2)}, {s(S_T2)}, 1
    s_add_u32 {s(S_T2)}, {s(S_T2)}, {s(S_H0)}
    s_lshl_b32 {s(S_T2)}, {s(S_T2)}, 10
    s_add_u32 {s(S_H0)}, {s(S_H0)}, {s(S_T0)}
    s_lshl_b32 {s(S_H0)}, {s(S_H0)}, 10
    s_add_u32 {s(S_H1)}, {s(S_H1)}, {s(S_T0)}
    s_lshl_b32 {s(S_H1)}, {s(S_H1)}, 10
    v_mov_b32 {v(V3_C0)}, {hx(f2u(GELU_C0))}
    v_mov_b32 {v(V3_C0 + 1)}, {hx(f2u(GELU_C0))}
    s_mov_b32 {s(S_C1)}, {hx(f2u(GELU_C1))}
    s_mov_b32 {s(S_C1 + 1)}, {hx(f2u(GELU_C1))}
    """)
    skip = k.uid("B_NOT3")
    for i, (mu, cs, so) in enumerate(((V3_MU, V3_CS, S_H0), (V3_MU + 2, V3_CS, S_H1), (V3_MU, V3_CS + 16, S_T2))):
        if i == 2:
            k.I(f"""
            s_add_u32 {s(S_T0)}, {s(S_RT)}, 4
            s_cmp_ge_u32 {s(S_T0)}, {s(S_N)}
            s_cbranch_scc1 {skip}
            """)
        A = V3_ACC + 16 * i
        for q in range(8):
            k.I(f"v_pk_fma_f32 {v(A + 2 * q, 2)}, {v(mu, 2)}, {v(cs + 2 * q, 2)}, {v(A + 2 * q, 2)} op_sel_hi:[0,1,1] neg_lo:[1,0,0] neg_hi:[1,0,0]")
        for q in range(8):
            k.I(f"v_pk_mul_f32 {v(A + 2 * q, 2)}, {v(A + 2 * q, 2)}, {v(mu, 2)} op_sel:[0,1] op_sel_hi:[1,1]")
        gelu_pairs(k, [A + 2 * q for q in range(8)], V3_G, V3_C0, S_C1)
        for hf in range(2):
            P = V3_G + 16 + 4 * hf
            for q in range(4):
                k.I(f"v_cvt_pk_bf16_f32 {v(P + q)}, {v(A + 8 * hf + 2 * q)}, {v(A + 8 * hf + 2 * q + 1)}")
            k.I(f"buffer_store_dwordx4 {v(P, 4)}, {v(V_L16)}, {s(S_O, 4)}, {s(so)} offen offset:{hf * 1024} {mods}")
    k.L(skip)


D4 = 6
V4_ACC = 8
V4_R = 72
NK4 = 22


def stage_w4(k, pre_wait, act_mods):
    k.I(f"""
    s_mul_i32 {s(S_T0)}, {s(S_WAVE)}, 22
    s_cmp_eq_u32 {s(S_WAVE)}, 3
    s_cselect_b32 {s(S_T0)}, 65, {s(S_T0)}
    s_lshl_b32 {s(S_T1)}, {s(S_T0)}, 4
    s_lshl_b32 {s(S_T2)}, {s(S_C)}, 1
    s_add_u32 {s(S_T1)}, {s(S_T1)}, {s(S_T2)}
    s_add_u32 {s(S_T1)}, {s(S_T1)}, {U_W4}
    s_lshl_b32 {s(S_WB0)}, {s(S_T1)}, 10
    s_lshl_b32 {s(S_T1)}, {s(S_G)}, 1
    s_mul_i32 {s(S_T1)}, {s(S_T1)}, 86
    s_add_u32 {s(S_T1)}, {s(S_T1)}, {s(S_T0)}
    s_lshl_b32 {s(S_H0)}, {s(S_T1)}, 10
    s_add_u32 {s(S_H1)}, {s(S_H0)}, {86 * 1024}
    """)
    srd(k, S_A, S_WS, 64 * 86 * 1024, HIDF)

    def wload(j):
        R = V4_R + 16 * (j % D4)
        for ct in range(2):
            k.I(f"buffer_load_dwordx4 {v(R + 8 + 4 * ct, 4)}, {v(V_L16)}, {s(S_W, 4)}, {s(S_WB0)} offen offset:{ct * 1024}")
        k.I(f"s_add_u32 {s(S_WB0)}, {s(S_WB0)}, 16384")

    def hload(j):
        R = V4_R + 16 * (j % D4)
        if j and j % 4 == 0:
            k.I(f"s_add_u32 {s(S_H0)}, {s(S_H0)}, 4096")
            k.I(f"s_add_u32 {s(S_H1)}, {s(S_H1)}, 4096")
        for rt, so in ((0, S_H0), (1, S_H1)):
            k.I(f"buffer_load_dwordx4 {v(R + 4 * rt, 4)}, {v(V_L16)}, {s(S_A, 4)}, {s(so)} offen offset:{(j % 4) * 1024} {act_mods}")

    prio_burst(k)
    for j in range(D4):
        wload(j)
    prio_valu(k)
    pre_wait(k)
    prio_burst(k)
    for j in range(D4):
        hload(j)
    prio_loop(k)
    done = k.uid("B_W4D")
    for j in range(NK4):
        if j < D4:
            n = 2 * (D4 - 1 - j) + 4 * min(j, NK4 - D4)
        else:
            n = 4 * (min(NK4 - 1, j + D4 - 1) - j)
        if j == NK4 - 1:
            k.I(f"s_cmp_ge_u32 {s(S_WAVE)}, 2")
            k.I(f"s_cbranch_scc1 {done}")
        k.I(f"s_waitcnt vmcnt({n})")
        R = V4_R + 16 * (j % D4)
        for rt in range(2):
            for ct in range(2):
                A = V4_ACC + 16 * (2 * rt + ct)
                c = "0" if j == 0 else v(A, 16)
                k.I(f"v_mfma_f32_32x32x16_bf16 {v(A, 16)}, {v(R + 8 + 4 * ct, 4)}, {v(R + 4 * rt, 4)}, {c}")
        if j + D4 < NK4:
            hload(j + D4)
            wload(j + D4)
    k.L(done)
    prio_valu(k)
    k.I(f"""
    s_waitcnt vmcnt(0)
    s_lshl_b32 {s(S_T0)}, {s(S_WAVE)}, 12
    v_add_u32 {v(V_RED)}, {s(S_T0)}, {v(V_L16)}
    """)
    k.nop(8)
    for t in range(4):
        for q in range(4):
            k.I(f"ds_write_b128 {v(V_RED)}, {v(V4_ACC + 16 * t + 4 * q, 4)} offset:{t * 16384 + q * 1024}")
    k.I(f"""
    s_lshl_b32 {s(S_T0)}, {s(S_WAVE)}, 14
    v_add_u32 {v(V_RED)}, {s(S_T0)}, {v(V_L16)}
    s_waitcnt lgkmcnt(0)
    s_barrier
    """)
    for sn in range(4):
        for q in range(4):
            k.I(f"ds_read_b128 {v(V4_ACC + 16 * sn + 4 * q, 4)}, {v(V_RED)} offset:{sn * 4096 + q * 1024}")
    for sn in range(4):
        k.I(f"s_waitcnt lgkmcnt({4 * (3 - sn)})")
        for i in range(8):
            k.I(f"v_pk_add_f32 {v(V_KEEP + 2 * i, 2)}, {v(V_KEEP + 2 * i, 2)}, {v(V4_ACC + 16 * sn + 2 * i, 2)}")


def stage_o(k, pre_wait, act_mods):
    srd(k, S_A, S_WS, 2 << 20, OF)
    srd(k, S_U, S_WS, 8192, GOFF)
    s64_bases(k, U_WO)
    k.I(f"""
    v_lshlrev_b32 {v(V_G)}, 2, {v(V_ROW)}
    buffer_load_dword {v(V_G)}, {v(V_G)}, {s(S_U, 4)}, 0 offen
    """)
    prio_burst(k)
    for i in range(16):
        s64_wload(k, i)
    prio_valu(k)
    pre_wait(k)
    prio_burst(k)
    for i in range(16):
        s64_aload(k, i, act_mods)
    s64_main(k, lambda i: k.I(f"s_waitcnt vmcnt({15 - i})"))
    B = V_KEEP
    for i in range(8):
        k.I(f"v_pk_add_f32 {v(V_ACC + 2 * i, 2)}, {v(V_ACC + 2 * i, 2)}, {v(B + 2 * i, 2)} neg_lo:[0,1] neg_hi:[0,1]")
    for i in range(8):
        k.I(f"v_pk_fma_f32 {v(V_ACC + 2 * i, 2)}, {v(V_ACC + 2 * i, 2)}, {v(V_G, 2)}, {v(B + 2 * i, 2)} op_sel_hi:[1,0,1]")
    srd(k, S_O, S_POUT, 2048 * 512 * 2)
    k.I(f"""
    v_lshlrev_b32 {v(V_RED)}, 10, {v(V_ROW)}
    v_lshl_add_u32 {v(V_RED)}, {v(V_H)}, 4, {v(V_RED)}
    s_lshl_b32 {s(S_T0)}, {s(S_C)}, 7
    s_lshl_b32 {s(S_T1)}, {s(S_KH)}, 6
    s_add_u32 {s(S_T0)}, {s(S_T0)}, {s(S_T1)}
    """)
    X = V_A
    for hf in range(2):
        for i in range(4):
            k.I(f"v_cvt_pk_bf16_f32 {v(X + 4 * hf + i)}, {v(V_ACC + 8 * hf + 2 * i)}, {v(V_ACC + 8 * hf + 2 * i + 1)}")
    k.nop(2)
    for hf in range(2):
        k.I(f"v_permlane32_swap_b32 {v(X + 4 * hf)}, {v(X + 4 * hf + 2)}")
        k.I(f"v_permlane32_swap_b32 {v(X + 4 * hf + 1)}, {v(X + 4 * hf + 3)}")
    for hf in range(2):
        k.I(f"buffer_store_dwordx4 {v(X + 4 * hf, 4)}, {v(V_RED)}, {s(S_O, 4)}, {s(S_T0)} offen offset:{hf * 32}")
```

```python
import sys
sys.path.insert(0, "gen")
from build import build
import common
if '--prof' in sys.argv:
    common.PROF_ON = True
    sys.argv.remove('--prof')
import k1, attn, k2b as k2
common.K1_STORE_MODS = "sc1"
common.A_PRIO = 3; common.A_PRIO_LOOP = 1; common.B_PRIO = 2; common.B_LOOP_PRIO = 0; common.B_BURST_PRIO = 0; common.TR_ISSUE_AFTER = 4; common.TR_WAIT_AFTER = 8
common.O_STORE_MODS = "sc1"
common.B_STORE_MODS = "sc1"
K1_TAKES = [{}, {"K1_DEC_H": True, "K1_EPI_H": True}, {"K1_STATS": True}, {"K1_STATS": True, "K1_NOZERO": True, "K1_TRANS": True}, {"K1_STATS": True, "K1_NOZERO": True}, {"K1_NOPF": True}, {"K1_EPI_K": True}, {"K1_VTYPE": True}, {"K1_LOADER": True}, {"K1_LOADER": True, "K1_NOCS_A": True, "K1_NOCS_B": True}, {"K1_LOADER": True, "K1_LOADER_H": True}]
def kernels():
    K = []
    K.append(dict(name=k1.NAME, asm=k1.gen(), grid=256, block=k1.BLOCK, lds=k1.LDS_BYTES, vgpr=k1.VGPRS, takes=K1_TAKES))
    K.append(dict(name=k2.NAME, asm=k2.gen(), grid=512, block=k2.BLOCK, lds=k2.LDS_BYTES, vgpr=k2.VGPRS,
                  takes=[{}, {"A_SLOW": [True, False], "A_STORE": [False, True]}, {"K2_B": True}]))
    return K
if __name__ == "__main__":
    out = sys.argv[1] if len(sys.argv) > 1 else "out2.s"
    build(kernels(), out)
```
